```python
import torch

def _softmax(x, axis=-1):
    return torch.softmax(x, dim=axis)
def _gelu(x):
    return torch.nn.functional.gelu(x, approximate="tanh")
def _silu(x):
    return torch.nn.functional.silu(x)
def _sigmoid(x):
    return torch.sigmoid(x)
def _layernorm(x, axis=-1, eps=1e-5):
    m = x.mean(dim=axis, keepdim=True)
    v = x.var(dim=axis, keepdim=True, unbiased=False)
    return (x - m) / torch.sqrt(v + eps)
def _scatter_add(tgt, idx, src, axis=0):
    return tgt.clone().index_add_(axis, idx, src)
def _segment_sum(src, seg, n):
    out = torch.zeros((n,) + src.shape[1:], dtype=src.dtype)
    return out.index_add_(0, seg, src)
def _pad(x, pw):
    flat = tuple(v for pair in reversed(pw) for v in pair)
    return torch.nn.functional.pad(x, flat)

kernel_name = 'recurrent_scan__mha_block__mixer_channel_mlp__prompt'

def setup_inputs():

    _w = (lambda a: (lambda t: t.to(torch.bfloat16) if t.is_floating_point() else t)(torch.as_tensor(a)))
    def _A_setup():
        B, S, D, H = 1, 2048, 1024, 32
        return {
            "x": _w((lambda *s: torch.randn(*s, dtype=torch.bfloat16) * 0.05)(B, S, D)),
            "wqkv": _w((lambda *s: torch.randn(*s, dtype=torch.bfloat16) * 0.05)(D, 3 * D)),
            "wo": _w((lambda *s: torch.randn(*s, dtype=torch.bfloat16) * 0.05)(D, D)),
        }
    _A_in = _A_setup()

    def _B_setup():
        B, S, D, F = 1, 2048, 1024, 3584
        return {
            "x": _w((lambda *s: torch.randn(*s, dtype=torch.bfloat16) * 0.05)(B, S, D)),
            "w1": _w((lambda *s: torch.randn(*s, dtype=torch.bfloat16) * 1.6)(D, F) * (D ** -0.5)),
            "b1": _w((lambda *s: torch.randn(*s, dtype=torch.bfloat16) * 0.8)(F)),
            "w2": _w((lambda *s: torch.randn(*s, dtype=torch.bfloat16) * 0.05)(F, D) * (F ** -0.5)),
            "b2": _w((lambda *s: torch.randn(*s, dtype=torch.bfloat16) * 0.05)(D)),
        }
    _B_in = _B_setup()

    return {
        "A_x": _A_in["x"],
        "A_wqkv": _A_in["wqkv"],
        "A_wo": _A_in["wo"],
        "B_x": _B_in["x"],
        "B_w1": _B_in["w1"],
        "B_b1": _B_in["b1"],
        "B_w2": _B_in["w2"],
        "B_b2": _B_in["b2"],
    }

def reference(A_x, A_wqkv, A_wo, B_x, B_w1, B_b1, B_w2, B_b2):
    def _A_ref(x, wqkv, wo):
        B, S, D = x.shape
        H = 32
        Dh = D // H
        qkv = (lambda x, *d: x.permute(*d))((x @ wqkv).reshape(B, S, 3, H, Dh), 2, 0, 3, 1, 4)
        q, k, v = qkv[0], qkv[1], qkv[2]
        scores = torch.einsum("bhqd,bhkd->bhqk", q, k) * (Dh ** -0.5)
        p = _softmax(scores, axis=-1)
        o = torch.einsum("bhqk,bhkd->bhqd", p, v)
        return (lambda x, *d: x.permute(*d))(o, 0, 2, 1, 3).reshape(B, S, D) @ wo

    def _B_ref(x, w1, b1, w2, b2):
        y = _layernorm(x, axis=-1)
        h = _gelu(torch.einsum("bsd,df->bsf", y, w1) + b1)
        return torch.einsum("bsf,fd->bsd", h, w2) + b2

    x = A_x
    xn = _layernorm(x, axis=-1)
    s = _A_ref(xn, A_wqkv, A_wo)
    g = _silu(_B_ref(xn, B_w1, B_b1, B_w2, B_b2))
    return x + s * g
```

```python
class Asm:
    def __init__(self):
        self.L = []
    def e(self, s):
        self.L.append(s if s.endswith(':') else '  ' + s)
    def c(self, s):
        self.L.append('  ; ' + s)
    def label(self, l):
        self.L.append(l + ':')
    def raw(self, s):
        self.L.append(s)
    def text(self):
        return '\n'.join(self.L) + '\n'

def rr(kind, base, n=1):
    if n == 1:
        return f'{kind}{base}'
    return f'{kind}[{base}:{base+n-1}]'

class Reg:
    def __init__(self, kind, base, n):
        self.kind, self.base, self.n = kind, base, n
    def __call__(self, off=0, n=1):
        assert off + n <= self.n, (off, n, self.n)
        return rr(self.kind, self.base + off, n)

ARG_X, ARG_WQKV, ARG_WO, ARG_BX, ARG_W1, ARG_B1, ARG_W2, ARG_B2, ARG_OUT, ARG_DBG, ARG_WS = [8*i for i in range(11)]

MB = 1 << 20
WS_XN = 0
WS_Q  = 4*MB
WS_K  = 8*MB
WS_V  = 12*MB
WS_O  = 16*MB
WS_H  = 20*MB
WS_P  = 36*MB
WS_R2 = 60*MB
WS_FLAGS = 61*MB
WS_PX = 36*MB
WS_SIZE = 268435456

def srd(a, d, plo, size, off=0):
    if off:
        a.e(f's_add_u32 s{d}, s{plo}, {hex(off)}')
        a.e(f's_addc_u32 s{d+1}, s{plo+1}, 0')
        a.e(f's_and_b32 s{d+1}, s{d+1}, 0xffff')
    else:
        a.e(f's_mov_b32 s{d}, s{plo}')
        a.e(f's_and_b32 s{d+1}, s{plo+1}, 0xffff')
    a.e(f's_mov_b32 s{d+2}, {hex(size)}')
    a.e(f's_mov_b32 s{d+3}, 0x20000')

def kernel_header(a, name):
    a.raw(f'.globl {name}')
    a.raw('.p2align 8')
    a.raw(f'.type {name},@function')
    a.label(name)

def kernel_desc(name, nvgpr, accum, nsgpr=102):
    return f'''.section .rodata,"a"
.p2align 6
.amdhsa_kernel {name}
  .amdhsa_next_free_vgpr {nvgpr}
  .amdhsa_next_free_sgpr {nsgpr}
  .amdhsa_accum_offset {accum}
  .amdhsa_group_segment_fixed_size 0
  .amdhsa_kernarg_size 88
  .amdhsa_user_sgpr_count 2
  .amdhsa_user_sgpr_kernarg_segment_ptr 1
  .amdhsa_system_sgpr_workgroup_id_x 1
  .amdhsa_float_denorm_mode_32 3
.end_amdhsa_kernel
.text
'''

def f2u(x):
    import struct
    return struct.unpack('<I', struct.pack('<f', x))[0]
def fhex(x):
    return hex(f2u(x))


PROF = False
def _P():
    import common
    return common.PROF
WS_PROF = 200*MB
_prof_idx = {}
def prof_begin(a, name):
    if not _P(): return
    _prof_idx.setdefault(name, len(_prof_idx))
    a.e('s_memrealtime s[92:93]')
    a.e('s_memtime s[94:95]')
def prof_mark(a, slot):
    if not _P(): return
    a.e(f's_memtime s[{80+2*slot}:{81+2*slot}]')
def finish(a, name):
    if _P():
        idx = _prof_idx[name]
        a.e('s_waitcnt vmcnt(0) lgkmcnt(0)')
        a.e('s_memrealtime s[96:97]')
        a.e('s_memtime s[98:99]')
        a.e(f's_load_dwordx2 s[100:101], s[0:1], {ARG_WS}')
        a.e('s_waitcnt lgkmcnt(0)')
        a.e(f's_add_u32 s100, s100, {WS_PROF + idx * 0x40000}')
        a.e('s_addc_u32 s101, s101, 0')
        a.e('s_mov_b64 exec, -1')
        a.e('v_lshrrev_b32 v1, 6, v0')
        a.e('s_lshl_b32 s3, s2, 3')
        a.e('v_add_u32 v1, s3, v1')
        a.e('v_lshlrev_b32 v1, 6, v1')
        a.e('v_mov_b32 v4, s92')
        a.e('v_mov_b32 v5, s96')
        a.e('v_mov_b32 v6, s94')
        a.e('v_mov_b32 v7, s98')
        a.e('global_store_dwordx4 v1, v[4:7], s[100:101]')
        for q in range(2):
            for r in range(4):
                a.e(f'v_mov_b32 v{8+4*q+r}, s{80+2*(4*q+r)}')
            a.e(f'global_store_dwordx4 v1, v[{8+4*q}:{11+4*q}], s[100:101] offset:{16+16*q}')
        a.e('s_getreg_b32 s3, hwreg(HW_REG_HW_ID)')
        a.e('s_getreg_b32 s4, hwreg(HW_REG_XCC_ID)')
        a.e('v_mov_b32 v4, s3')
        a.e('v_mov_b32 v5, s4')
        a.e('global_store_dwordx2 v1, v[4:5], s[100:101] offset:48')
    a.e('s_endpgm')

STORE_FLAGS = {'k1': '', 'mid': '', 'k0': ''}
def stf(k):
    import common
    f = common.STORE_FLAGS[k]
    return (' ' + f) if f else ''

PF = dict(k0=True, k1=True)
def prefetch_lines(a, srd_base, ptr_lo, nbytes, wg_sgpr, nwg, vtmp, vdst, stmp, waves=4, junk=None):
    lines = nbytes // 128
    per_wg = -(-lines // nwg)
    per_wave = -(-per_wg // waves)
    n = -(-per_wave // 64)
    srd(a, srd_base, ptr_lo, nbytes)
    a.e(f's_mul_i32 s{stmp}, s{wg_sgpr}, {per_wg * 128}')
    a.e(f'v_lshrrev_b32 v{vtmp}, 6, v0')
    a.e(f'v_mul_u32_u24 v{vtmp}, {n * 64}, v{vtmp}')
    a.e(f'v_and_b32 v{vdst}, 63, v0')
    a.e(f'v_add_u32 v{vtmp}, v{vtmp}, v{vdst}')
    a.e(f'v_lshlrev_b32 v{vtmp}, 7, v{vtmp}')
    a.e(f'v_add_u32 v{vtmp}, s{stmp}, v{vtmp}')
    for i in range(n):
        if i: a.e(f'v_add_u32 v{vtmp}, 8192, v{vtmp}')
        a.e(f'buffer_load_dword v{junk}, v{vtmp}, s[{srd_base}:{srd_base+3}], 0 offen')
    return n

CODEPF = dict(on=True)
def prefetch_code(a, start, end, junk, vtmp, nops_counter=None):
    import common
    if not common.CODEPF['on']: return 0
    lab = f'L_pc_{start}'
    a.e('s_getpc_b64 s[98:99]')
    a.label(lab)
    a.e(f's_sub_u32 s98, s98, {lab} - {start}')
    a.e('s_subb_u32 s99, s99, 0')
    a.e('s_lshr_b32 s97, s2, 3')
    a.e('s_and_b32 s97, s97, 31')
    a.e('s_lshl_b32 s97, s97, 15')
    a.e(f'v_lshlrev_b32 v{vtmp}, 7, v0')
    a.e(f'v_add_u32 v{vtmp}, s97, v{vtmp}')
    a.e(f's_mov_b32 s97, {end} - {start} - 4')
    a.e(f'v_min_u32 v{vtmp}, s97, v{vtmp}')
    a.e(f'v_and_b32 v{vtmp}, -4, v{vtmp}')
    a.e(f'global_load_dword v{junk}, v{vtmp}, s[98:99]')
    return 1

ENG = dict(g32=True)
```

```python
from common import *
import re

GOPT = dict(nobar=False, prio=None)
class GemmCfg:
    def __init__(self, name, NB, TB, nsteps, swapped, kperm, wstride,
                 acc_plan, ring_kind='a', R=8, XR=4, PD=4, WR=8, unroll=8):
        self.name = name; self.NB = NB; self.TB = TB; self.nsteps = nsteps
        self.swapped = swapped; self.kperm = kperm; self.wstride = wstride
        self.R = R; self.XR = XR; self.PD = PD; self.WR = WR; self.unroll = unroll
        self.RB = NB * 32
        self.SS = 32 * self.RB
        self.Q = NB // 4
        self.acc_plan = acc_plan
        self.ring_kind = ring_kind
        self.nlo = 8 if NB in (8, 16) else 4
        self.nsets = 2 if R * self.SS > 65536 else 1
        self.XL = TB; self.xstep = 1024; self.nxo = TB

S_W   = 40
S_XOFF = 41
S_WOFF = 42
S_M0B = 43
S_LOOP = 44
SRD_X = 48
SRD_W = 52

def kperm_py(kind, rho):
    g = (rho >> 2) & 3; jhi = rho >> 4; jlo = rho & 3
    if kind == 'id': return rho
    if kind == 'nat': return 8 * g + 4 * jhi + jlo
    if kind == 'o32': return 16 * (g & 1) + 8 * jhi + 4 * (g >> 1) + jlo
    raise ValueError(kind)

class GemmEngine:
    def __init__(self, a, cfg, vbase, xring_base, wring_base, sregs=None):
        self.a = a; self.cfg = cfg
        sr = dict(xoff=S_XOFF, woff=S_WOFF, m0b=S_M0B, srdx=SRD_X, srdw=SRD_W)
        sr.update(sregs or {})
        self.sx, self.sw, self.sm, self.rx, self.rw = sr['xoff'], sr['woff'], sr['m0b'], sr['srdx'], sr['srdw']
        c = cfg
        v = vbase
        self.vXo = [v + i for i in range(c.nxo)]; v += c.nxo
        self.vDo = [v + i for i in range(c.Q)]; v += c.Q
        self.vTr = [[v + s * c.nlo + i for i in range(c.nlo)] for s in range(c.nsets)]; v += c.nsets * c.nlo
        self.vend = v
        self.xring = Reg(c.ring_kind, xring_base, c.XR * c.XL * 4)
        self.wring = Reg(c.ring_kind, wring_base, c.WR * 4)
        self.lds_base = 0

    def emit_kperm(self, rho, t2, t3):
        a, c = self.a, self.cfg
        if c.kperm == 'id': return
        a.e(f'v_bfe_u32 v{t2}, v{rho}, 2, 2')
        a.e(f'v_lshrrev_b32 v{t3}, 4, v{rho}')
        a.e(f'v_and_b32 v{rho}, 3, v{rho}')
        if c.kperm == 'nat':
            a.e(f'v_lshl_add_u32 v{rho}, v{t2}, 3, v{rho}')
            a.e(f'v_lshl_add_u32 v{rho}, v{t3}, 2, v{rho}')
        else:
            a.e(f'v_lshl_add_u32 v{rho}, v{t3}, 3, v{rho}')
            a.e(f'v_and_b32 v{t3}, 1, v{t2}')
            a.e(f'v_lshl_add_u32 v{rho}, v{t3}, 4, v{rho}')
            a.e(f'v_lshrrev_b32 v{t2}, 1, v{t2}')
            a.e(f'v_lshl_add_u32 v{rho}, v{t2}, 2, v{rho}')

    def setup_dma(self, vt, lds_base=0):
        a, c = self.a, self.cfg
        self.lds_base = lds_base
        t0, t1, t2, t3 = vt, vt + 1, vt + 2, vt + 3
        a.e(f's_mov_b32 s45, {c.wstride}')
        if c.NB in (4, 8, 16):
            CPR = c.NB * 2; sh = {8: 3, 16: 4, 32: 5}[CPR]; RPI = 64 // CPR
            a.e(f'v_and_b32 v{t0}, 63, v0')
            a.e(f'v_lshrrev_b32 v{t1}, {sh}, v{t0}')
            a.e(f's_mul_i32 s46, s{S_W}, {RPI}')
            a.e(f'v_add_u32 v{t1}, s46, v{t1}')
            a.e(f'v_and_b32 v{t0}, {CPR - 1}, v{t0}')
            if c.nlo == 8:
                a.e(f'v_and_b32 v{t2}, 7, v{t1}')
            else:
                a.e(f'v_bfe_u32 v{t2}, v{t1}, 1, 2')
            a.e(f'v_lshlrev_b32 v{t2}, 1, v{t2}')
            a.e(f'v_xor_b32 v{t0}, v{t0}, v{t2}')
            a.e(f'v_lshlrev_b32 v{t0}, 4, v{t0}')
            self.emit_kperm(t1, t2, t3)
            a.e(f'v_mul_lo_u32 v{t1}, v{t1}, s45')
            a.e(f'v_add_u32 v{self.vDo[0]}, v{t0}, v{t1}')
            for q in range(1, c.Q):
                step = 4 * RPI * q
                d = kperm_py(c.kperm, step)
                for r0 in range(4 * RPI):
                    assert kperm_py(c.kperm, r0 + step) == kperm_py(c.kperm, r0) + d
                    assert ((r0 + step) & 7) == (r0 & 7)
                a.e(f'v_add_u32 v{self.vDo[q]}, {d * c.wstride}, v{self.vDo[0]}')
            self.m0_of = lambda q: q * 4096
            a.e(f's_lshl_b32 s{self.sm}, s{S_W}, 10')
        else:
            assert c.NB == 12
            a.e(f's_lshl_b32 s46, s{S_W}, 3')
            for q in range(3):
                a.e(f'v_and_b32 v{t0}, 63, v0')
                if q: a.e(f'v_add_u32 v{t0}, {64 * q}, v{t0}')
                a.e(f'v_mul_u32_u24 v{t1}, 2731, v{t0}')
                a.e(f'v_lshrrev_b32 v{t1}, 16, v{t1}')
                a.e(f'v_mul_u32_u24 v{t2}, 24, v{t1}')
                a.e(f'v_sub_u32 v{t0}, v{t0}, v{t2}')
                a.e(f'v_bfe_u32 v{t2}, v{t1}, 1, 2')
                a.e(f'v_lshlrev_b32 v{t2}, 1, v{t2}')
                a.e(f'v_xor_b32 v{t0}, v{t0}, v{t2}')
                a.e(f'v_lshlrev_b32 v{t0}, 4, v{t0}')
                a.e(f'v_add_u32 v{t1}, s46, v{t1}')
                self.emit_kperm(t1, t2, t3)
                a.e(f'v_mul_lo_u32 v{t1}, v{t1}, s45')
                a.e(f'v_add_u32 v{self.vDo[q]}, v{t0}, v{t1}')
            self.m0_of = lambda q: q * 1024
            a.e(f's_mul_i32 s{self.sm}, s{S_W}, 3072')
        if lds_base:
            a.e(f's_add_u32 s{self.sm}, s{self.sm}, {lds_base}')
        a.e(f's_mov_b32 s{self.sx}, 0')
        a.e(f's_mov_b32 s{self.sw}, 0')

    def setup_tr(self, vt):
        a, c = self.a, self.cfg
        t0, t1, t2 = vt, vt + 1, vt + 2
        a.e(f'v_bfe_u32 v{t1}, v0, 2, 4')
        if c.nlo == 8:
            a.e(f'v_and_b32 v{t2}, 7, v{t1}')
        else:
            a.e(f'v_bfe_u32 v{t2}, v{t1}, 1, 2')
        a.e(f'v_lshlrev_b32 v{t2}, 5, v{t2}')
        a.e(f'v_mul_u32_u24 v{t1}, {c.RB}, v{t1}')
        a.e(f'v_and_b32 v{t0}, 3, v0')
        a.e(f'v_lshl_add_u32 v{t1}, v{t0}, 3, v{t1}')
        if self.lds_base:
            a.e(f'v_add_u32 v{t1}, {self.lds_base}, v{t1}')
        for lo in range(c.nlo):
            a.e(f'v_xor_b32 v{t0}, {lo * 32}, v{t2}')
            a.e(f'v_add_u32 v{self.vTr[0][lo]}, v{t0}, v{t1}')
            if c.nsets == 2:
                a.e(f'v_add_u32 v{self.vTr[1][lo]}, {(c.R // 2) * c.SS}, v{self.vTr[0][lo]}')

    def x_load(self, step, tb):
        c = self.cfg
        dst = self.xring(((step % c.XR) * c.TB + tb) * 4, 4)
        return (f'buffer_load_dwordx4 {dst}, v{self.vXo[tb]}, s[{self.rx}:{self.rx+3}], s{self.sx} offen', ('x', step))
    def dma(self, tile, q):
        c = self.cfg
        off = (tile % c.R) * c.SS + self.m0_of(q)
        return (f's_add_u32 m0, s{self.sm}, {off}',
                f'buffer_load_dwordx4 v{self.vDo[q]}, s[{self.rw}:{self.rw+3}], s{self.sw} offen lds', ('w', tile))
    def tr_read(self, F, half):
        c = self.cfg
        step, cb = divmod(F, c.NB)
        st = step % c.R
        sset = st // (c.R // 2) if c.nsets == 2 else 0
        stl = st - sset * (c.R // 2) if c.nsets == 2 else st
        lo = cb % c.nlo; hi = cb // c.nlo
        off = stl * c.SS + half * 16 * c.RB + hi * c.nlo * 32
        assert off < 65536
        dst = self.wring((F % c.WR) * 4 + 2 * half, 2)
        return f'ds_read_b64_tr_b16 {dst}, v{self.vTr[sset][lo]} offset:{off}'
    def mfma(self, F, tb):
        c = self.cfg
        step, cb = divmod(F, c.NB)
        kind, base = c.acc_plan(cb, tb)
        acc = rr(kind, base, 4)
        w = self.wring((F % c.WR) * 4, 4)
        x = self.xring(((step % c.XR) * c.TB + tb) * 4, 4)
        if c.swapped:
            return f'v_mfma_f32_16x16x32_bf16 {acc}, {w}, {x}, {acc}'
        return f'v_mfma_f32_16x16x32_bf16 {acc}, {x}, {w}, {acc}'

    def build(self, w_pro, x_pro, overrun, extra=None, tail=None, w_landed=False, rate=2, tail_start=0, inject=None):
        c = self.cfg
        vm = []
        def wait_for(tag):
            idx = [i for i, t in enumerate(vm) if t == tag]
            if not idx:
                assert w_landed and tag[0] == 'w' and tag[1] < w_pro, tag
                return 63
            return len(vm) - 1 - idx[-1]
        DX = c.XR - 1; DW = c.R - 2
        xfl = getattr(c, 'xflags', '')
        def emit_x(out, s):
            for tb in range(c.XL):
                l, t = self.x_load(s, tb); out.append(l + xfl); vm.append(t)
            out.append(f's_add_u32 s{self.sx}, s{self.sx}, {c.xstep}')
        def emit_w(out, t, track=True):
            for q in range(c.Q):
                m, l, tag = self.dma(t, q); out.append(m); out.append('s_nop 0'); out.append(l)
                if track: vm.append(tag)
            out.append(f's_add_u32 s{self.sw}, s{self.sw}, {32 * c.wstride}')
        prow = []; pro = []
        if w_landed:
            for t in range(w_pro): emit_w(prow, t, track=False)
            for t in range(x_pro): emit_x(pro, t)
        else:
            for t in range(max(w_pro, x_pro)):
                if t < w_pro: emit_w(pro, t)
                if t < x_pro: emit_x(pro, t)
        ext = []
        for l in (extra or []):
            ext.append(l)
            if l.startswith('buffer_') or l.startswith('global_'): vm.append(('e', 0))
        n0 = min(wait_for(('x', 0)), wait_for(('w', 0)))
        pro2 = [f's_waitcnt vmcnt({min(n0, 63)})', 's_barrier']
        for F in range(c.PD):
            pro2 += [self.tr_read(F, 0), self.tr_read(F, 1)]
        steps = []
        total = c.nsteps * c.NB
        tail = list(tail or [])
        nw, nx = w_pro, x_pro
        lim = 10 ** 9 if overrun else c.nsteps
        for s in range(c.nsteps):
            out = []
            xs = []; ws = []
            for _ in range(rate):
                if nx < min(s + DX + 1, lim):
                    for tb in range(c.XL):
                        l, t = self.x_load(nx, tb)
                        xs.append([[(l + xfl, t)] + ([(f's_add_u32 s{self.sx}, s{self.sx}, {c.xstep}', None)] if tb == c.XL - 1 else [])])
                    nx += 1
                if nw < min(s + DW + 1, lim):
                    for q in range(c.Q):
                        m, l, t = self.dma(nw, q)
                        ws.append([[(m, None)], [(l, t)] + ([(f's_add_u32 s{self.sw}, s{self.sw}, {32 * c.wstride}', None)] if q == c.Q - 1 else [])])
                    nw += 1
            if tail and s >= tail_start:
                n_here = -(-len(tail) // max(1, (c.nsteps - 1 - s)))
                for _ in range(min(n_here, len(tail))):
                    ws.append([tail.pop(0)])
            for op in (inject or {}).get(s, []):
                ws.append([op])
            ops = []
            while xs or ws:
                if xs: ops.append(xs.pop(0))
                if ws: ops.append(ws.pop(0))
            nslots = c.NB * c.TB
            place = {}
            for i, op in enumerate(ops):
                p = (i * nslots) // len(ops) + (1 if nslots // len(ops) >= 4 else 0)
                for j, part in enumerate(op):
                    place.setdefault(min(p + j, nslots - 1), []).extend(part)
            nb_bar = c.NB - c.PD
            for cb in range(c.NB):
                F = s * c.NB + cb
                nxt = F + c.PD
                has_next = overrun or nxt < total
                infl = sum(2 for k in range(1, c.PD) if overrun or F + k < total)
                out.append(f's_waitcnt lgkmcnt({infl})')
                for tb in range(c.TB):
                    out.append(self.mfma(F, tb))
                    if tb == 0 and cb == nb_bar and (overrun or s + 1 < c.nsteps):
                        n = min(wait_for(('x', s + 1)), wait_for(('w', s + 1)))
                        out.append(f's_waitcnt vmcnt({min(n, 63)})')
                        if not GOPT['nobar']: out.append('s_barrier')
                    if has_next and tb == 0: out.append(self.tr_read(nxt, 0))
                    if has_next and tb == min(1, c.TB - 1): out.append(self.tr_read(nxt, 1))
                    for (l, t) in place.get(cb * c.TB + tb, []):
                        if l == 'WAIT':
                            out.append(f's_waitcnt vmcnt({min(wait_for(t), 63)})')
                            continue
                        if l.endswith(' lds') and out[-1].startswith('s_add_u32 m0'): out.append('s_nop 0')
                        out.append(l)
                        if t: vm.append(t)
            steps.append(out)
        assert not tail
        return prow, pro, ext, pro2, steps

    def emit(self, label, between=None, extra=None, tail=None, w_pro=None, x_pro=None, overrun=True,
             w_landed=False, after_w=None, marks=True, rate=2, tail_start=0, after_bar=None, inject=None, w_split=None, mid_w=None):
        a, c = self.a, self.cfg
        if w_pro is None: w_pro = c.R - 2
        if x_pro is None: x_pro = c.XR - 1
        prow, pro, ext, pro2, steps = self.build(w_pro, x_pro, overrun, extra, tail, w_landed, rate, tail_start, inject)
        if w_split is not None:
            n1 = w_split * (3 * c.Q + 1)
            for l in prow[:n1]: a.e(l)
            mid_w()
            for l in prow[n1:]: a.e(l)
        else:
            for l in prow: a.e(l)
        if after_w: after_w()
        for l in pro: a.e(l)
        for l in ext: a.e(l)
        if between: between()
        if marks and not w_landed: prof_mark(a, 0)
        for l in pro2[:2]: a.e(l)
        if after_bar: after_bar()
        for l in pro2[2:]: a.e(l)
        if marks: prof_mark(a, 1)
        U = c.unroll
        nit = c.nsteps // U
        assert nit * U == c.nsteps
        chunks = [sum(steps[i*U:(i+1)*U], []) for i in range(nit)]
        gen = lambda ch: [re.sub(r'vmcnt\(\d+\)', 'vmcnt(N)', l) for l in ch]
        G = [gen(ch) for ch in chunks]
        i = 0; nloop = 0
        while i < nit:
            j = i + 1
            while j < nit and G[j] == G[i]: j += 1
            if j - i > 1:
                body = list(chunks[i])
                for li, l in enumerate(body):
                    if re.match(r's_waitcnt vmcnt\((\d+)\)', l):
                        n = min(int(re.match(r's_waitcnt vmcnt\((\d+)\)', chunks[k][li]).group(1)) for k in range(i, j))
                        body[li] = f's_waitcnt vmcnt({n})'
                a.e(f's_mov_b32 s{S_LOOP}, {j - i}')
                a.raw('.p2align 4')
                a.label(f'L_{label}_loop{nloop}')
                for l in body: a.e(l)
                a.e(f's_sub_u32 s{S_LOOP}, s{S_LOOP}, 1')
                a.e(f's_cmp_lg_u32 s{S_LOOP}, 0')
                a.e(f's_cbranch_scc1 L_{label}_loop{nloop}')
                nloop += 1
            else:
                for l in chunks[i]: a.e(l)
            i = j
        if marks: prof_mark(a, 2)


class Gemm32Cfg(GemmCfg):
    def __init__(self, name, CT, nsteps, kperm, wstride, acc_base, ring_kind='v', R=8, XR=4, PD=4, WR=8, unroll=8):
        GemmCfg.__init__(self, name, 2 * CT, 1, nsteps, True, kperm, wstride, None, ring_kind, R, XR, PD, WR, unroll)
        self.CT = CT
        self.RB = CT * 64
        self.SS = 32 * self.RB
        self.Q = self.SS // 4096
        self.nlo = CT
        self.nsets = 2 if R * self.SS > 65536 else 1
        assert self.nsets == 1
        self.XL = 2; self.xstep = 2048; self.nxo = 1
        self.acc_base = acc_base

def kperm32_py(kind, rho):
    if kind == 'id': return rho
    if kind == 'sw34': return (rho & 7) | ((rho & 8) << 1) | ((rho & 16) >> 1)
    raise ValueError(kind)

class Gemm32Engine(GemmEngine):
    def setup_dma(self, vt, lds_base=0, xor_bytes=None):
        a, c = self.a, self.cfg
        self.lds_base = lds_base
        t0, t1, t2, t3 = vt, vt + 1, vt + 2, vt + 3
        CPR = c.RB // 16; sh = {8: 3, 16: 4}[CPR]; RPI = 64 // CPR
        a.e(f's_mov_b32 s45, {c.wstride}')
        a.e(f'v_and_b32 v{t0}, 63, v0')
        a.e(f'v_lshrrev_b32 v{t1}, {sh}, v{t0}')
        a.e(f's_mul_i32 s46, s{S_W}, {RPI}')
        a.e(f'v_add_u32 v{t1}, s46, v{t1}')
        a.e(f'v_and_b32 v{t0}, {CPR - 1}, v{t0}')
        if c.CT == 4: a.e(f'v_and_b32 v{t2}, 3, v{t1}')
        else: a.e(f'v_bfe_u32 v{t2}, v{t1}, 1, 1')
        a.e(f'v_lshlrev_b32 v{t2}, 2, v{t2}')
        a.e(f'v_xor_b32 v{t0}, v{t0}, v{t2}')
        a.e(f'v_lshlrev_b32 v{t0}, 4, v{t0}')
        if xor_bytes is not None: a.e(f'v_xor_b32 v{t0}, s{xor_bytes}, v{t0}')
        if c.kperm == 'sw34':
            a.e(f'v_and_b32 v{t2}, 8, v{t1}')
            a.e(f'v_and_b32 v{t3}, 16, v{t1}')
            a.e(f'v_and_b32 v{t1}, 7, v{t1}')
            a.e(f'v_lshl_add_u32 v{t1}, v{t2}, 1, v{t1}')
            a.e(f'v_lshrrev_b32 v{t3}, 1, v{t3}')
            a.e(f'v_add_u32 v{t1}, v{t1}, v{t3}')
        a.e(f'v_mul_lo_u32 v{t1}, v{t1}, s45')
        a.e(f'v_add_u32 v{self.vDo[0]}, v{t0}, v{t1}')
        for q in range(1, c.Q):
            step = 4 * RPI * q
            d = kperm32_py(c.kperm, step)
            for r0 in range(4 * RPI):
                assert kperm32_py(c.kperm, r0 + step) == kperm32_py(c.kperm, r0) + d
                assert ((r0 + step) & 3) == (r0 & 3)
            a.e(f'v_add_u32 v{self.vDo[q]}, {d * c.wstride}, v{self.vDo[0]}')
        self.m0_of = lambda q: q * 4096
        a.e(f's_lshl_b32 s{self.sm}, s{S_W}, 10')
        if lds_base: a.e(f's_add_u32 s{self.sm}, s{self.sm}, {lds_base}')
        a.e(f's_mov_b32 s{self.sx}, 0')
        a.e(f's_mov_b32 s{self.sw}, 0')

    def setup_tr(self, vt):
        a, c = self.a, self.cfg
        t0, t1, t2 = vt, vt + 1, vt + 2
        a.e(f'v_bfe_u32 v{t0}, v0, 2, 2')
        a.e(f'v_bfe_u32 v{t1}, v0, 5, 1')
        a.e(f'v_lshl_add_u32 v{t1}, v{t1}, 2, v{t0}')
        if c.CT == 4: a.e(f'v_lshlrev_b32 v{t2}, 6, v{t0}')
        else:
            a.e(f'v_lshrrev_b32 v{t2}, 1, v{t0}')
            a.e(f'v_lshlrev_b32 v{t2}, 6, v{t2}')
        a.e(f'v_mul_u32_u24 v{t1}, {c.RB}, v{t1}')
        a.e(f'v_bfe_u32 v{t0}, v0, 4, 1')
        a.e(f'v_lshl_add_u32 v{t1}, v{t0}, 5, v{t1}')
        a.e(f'v_and_b32 v{t0}, 3, v0')
        a.e(f'v_lshl_add_u32 v{t1}, v{t0}, 3, v{t1}')
        if self.lds_base: a.e(f'v_add_u32 v{t1}, {self.lds_base}, v{t1}')
        for ct in range(c.CT):
            a.e(f'v_xor_b32 v{t0}, {ct * 64}, v{t2}')
            a.e(f'v_add_u32 v{self.vTr[0][ct]}, v{t0}, v{t1}')

    def x_load(self, step, m):
        c = self.cfg
        dst = self.xring(((step % c.XR) * 2 + m) * 4, 4)
        return (f'buffer_load_dwordx4 {dst}, v{self.vXo[0]}, s[{self.rx}:{self.rx+3}], s{self.sx} offen offset:{1024 * m}', ('x', step))
    def tr_read(self, F, half):
        c = self.cfg
        step, f = divmod(F, c.NB)
        m, ct = divmod(f, c.CT)
        off = (step % c.R) * c.SS + (8 * m + 16 * half) * c.RB
        assert off < 65536
        dst = self.wring((F % c.WR) * 4 + 2 * half, 2)
        return f'ds_read_b64_tr_b16 {dst}, v{self.vTr[0][ct]} offset:{off}'
    def mfma(self, F, tb):
        c = self.cfg
        step, f = divmod(F, c.NB)
        m, ct = divmod(f, c.CT)
        acc = rr('v', c.acc_base + 16 * ct, 16)
        w = self.wring((F % c.WR) * 4, 4)
        x = self.xring(((step % c.XR) * 2 + m) * 4, 4)
        return f'v_mfma_f32_32x32x16_bf16 {acc}, {w}, {x}, {acc}'
```

```python
from common import *
import common

def gen_k0(name='ln_kernel'):
    a = Asm()
    kernel_header(a, name)
    prof_begin(a, name)
    a.e('s_cmp_ge_u32 s2, 256')
    a.e(f's_cbranch_scc1 L_{name}_end')
    a.e(f's_load_dwordx2 s[4:5], s[0:1], {ARG_X}')
    a.e(f's_load_dwordx2 s[6:7], s[0:1], {ARG_WS}')
    a.e('v_and_b32 v1, 7, v0')
    a.e('v_lshrrev_b32 v2, 3, v0')
    a.e('s_lshl_b32 s3, s2, 3')
    a.e('v_add_u32 v3, s3, v1')
    a.e('v_lshlrev_b32 v3, 11, v3')
    a.e('v_lshl_add_u32 v3, v2, 4, v3')
    a.e('s_waitcnt lgkmcnt(0)')
    srd(a, 8, 4, 4*MB)
    srd(a, 12, 6, 4*MB, WS_XN)
    srd(a, 16, 6, 8192, WS_R2)
    for i in range(4):
        a.e(f'buffer_load_dwordx4 v[{8+4*i}:{11+4*i}], v3, s[8:11], 0 offen offset:{512*i}')
    npf = 0
    if PF['k0']:
        a.e(f's_load_dwordx2 s[30:31], s[0:1], {ARG_WQKV}')
        a.e(f's_load_dwordx2 s[32:33], s[0:1], {ARG_W1}')
        a.e('s_waitcnt lgkmcnt(0)')
        npf += prefetch_lines(a, 36, 30, 1024*3072*2, 2, 256, 126, 125, 34, junk=127)
        npf += prefetch_lines(a, 40, 32, 1024*3584*2, 2, 256, 126, 125, 34, junk=127)
    a.e('s_lshr_b32 s20, s2, 1')
    a.e('s_lshl_b32 s20, s20, 15')
    a.e('s_and_b32 s21, s2, 1')
    a.e('s_lshl_b32 s21, s21, 7')
    a.e('s_add_u32 s20, s20, s21')
    a.e('v_lshrrev_b32 v4, 2, v2')
    a.e('v_lshlrev_b32 v4, 10, v4')
    a.e('v_and_b32 v5, 3, v2')
    a.e('v_lshlrev_b32 v5, 8, v5')
    a.e('v_add_u32 v4, v4, v5')
    a.e('v_lshl_add_u32 v4, v1, 4, v4')
    a.e('v_add_u32 v4, s20, v4')
    a.e('s_mov_b32 s24, 0')
    a.e('s_mov_b32 s25, 8192')
    a.e('s_mov_b32 s26, 16384')
    a.e('s_mov_b32 s27, 24576')
    a.e('v_lshrrev_b32 v6, 6, v0')
    a.e('v_lshl_add_u32 v6, v6, 3, v1')
    a.e('v_lshlrev_b32 v6, 2, v6')
    a.e('v_lshlrev_b32 v7, 2, v1')
    for i in range(4):
        a.e(f's_waitcnt vmcnt({3-i+npf})')
        for j in range(4):
            s = 8 + 4*i + j
            d = 32 + 8*i + 2*j
            a.e(f'v_lshlrev_b32 v{d}, 16, v{s}')
            a.e(f'v_and_b32 v{d+1}, 0xffff0000, v{s}')
    def tree(src, n, dst, tmp):
        cur = [src+i for i in range(n)]
        t = tmp
        while len(cur) > 1:
            nxt = []
            for p in range(0, len(cur), 2):
                d = t; t += 1
                a.e(f'v_add_f32 v{d}, v{cur[p]}, v{cur[p+1]}')
                nxt.append(d)
            cur = nxt
        a.e(f'v_mov_b32 v{dst}, v{cur[0]}')
    def wg_reduce(v, ldsoff):
        a.e('s_nop 1')
        a.e(f'v_add_f32_dpp v{v}, v{v}, v{v} row_ror:8 row_mask:0xf bank_mask:0xf')
        a.e(f'v_mov_b32 v25, v{v}')
        a.e('s_nop 1')
        a.e(f'v_permlane16_swap_b32 v{v}, v25')
        a.e('s_nop 1')
        a.e(f'v_add_f32 v{v}, v{v}, v25')
        a.e(f'v_mov_b32 v25, v{v}')
        a.e('s_nop 1')
        a.e(f'v_permlane32_swap_b32 v{v}, v25')
        a.e('s_nop 1')
        a.e(f'v_add_f32 v{v}, v{v}, v25')
        a.e(f'ds_write_b32 v6, v{v} offset:{ldsoff}')
        a.e('s_waitcnt lgkmcnt(0)')
        a.e('s_barrier')
        for k in range(4):
            a.e(f'ds_read_b32 v{26+k}, v7 offset:{ldsoff+32*k}')
        a.e('s_waitcnt lgkmcnt(0)')
        a.e('v_add_f32 v26, v26, v27')
        a.e('v_add_f32 v28, v28, v29')
        a.e(f'v_add_f32 v{v}, v26, v28')
    tree(32, 32, 24, 64)
    wg_reduce(24, 0)
    a.e(f'v_mul_f32 v24, {fhex(1.0/1024)}, v24')
    for i in range(32):
        a.e(f'v_sub_f32 v{32+i}, v{32+i}, v24')
    for i in range(32):
        a.e(f'v_mul_f32 v{64+i}, v{32+i}, v{32+i}')
    tree(64, 32, 24, 96)
    wg_reduce(24, 128)
    a.e(f'v_mul_f32 v24, {fhex(1.0/1024)}, v24')
    a.e(f'v_add_f32 v30, {fhex(1e-5)}, v24')
    a.e('v_rsq_f32 v30, v30')
    a.e('s_nop 0')
    for i in range(32):
        a.e(f'v_mul_f32 v{32+i}, v{32+i}, v30')
    for i in range(16):
        a.e(f'v_cvt_pk_bf16_f32 v{8+i}, v{32+2*i}, v{33+2*i}')
    for i in range(4):
        a.e(f'buffer_store_dwordx4 v[{8+4*i}:{11+4*i}], v4, s[12:15], s{24+i} offen' + stf('k0'))
    a.e('v_mul_f32 v31, v30, v30')
    a.e('v_mul_f32 v31, v31, v24')
    a.e(f'v_add_f32 v31, {fhex(1e-5)}, v31')
    a.e('v_rsq_f32 v31, v31')
    a.e('v_add_u32 v5, s3, v1')
    a.e('v_lshlrev_b32 v5, 2, v5')
    a.e('v_cmp_gt_u32 vcc, 8, v0')
    a.e('s_and_saveexec_b64 s[28:29], vcc')
    a.e(f's_cbranch_execz L_{name}_end')
    a.e('buffer_store_dword v31, v5, s[16:19], 0 offen')
    a.label(f'L_{name}_end')
    finish(a, name)
    return a.text() + kernel_desc(name, 128, 128)
```

```python
from common import *
import common
from gemm import *
import ln
from k2_gemm2 import poll

QSCALE = (32 ** -0.5) * 1.4426950408889634
ATT = 32

K1OPT = dict(XR=4, wpro=2, xpro=2, rate=2, fuse_ln=True, wpro_ln=6, wsplit=2)
def acc_plan_factory(NB, TB, vfirst):
    n_arch = min(NB, (256 - vfirst) // (4 * TB))
    def plan(cb, tb):
        if cb < n_arch:
            return ('v', vfirst + (cb * TB + tb) * 4)
        return ('a', K1OPT['XR'] * 16 + 32 + ((cb - n_arch) * TB + tb) * 4)
    return plan, n_arch

def zero_acc(a, cfg):
    for cb in range(cfg.NB):
        for tb in range(cfg.TB):
            k, b = cfg.acc_plan(cb, tb)
            for r in range(4):
                a.e(f'v_mov_b32 v{b+r}, 0' if k == 'v' else f'v_accvgpr_write_b32 a{b+r}, 0')

def zero_acc_mfma(a, cfg):
    for r in range(4): a.e(f'v_mov_b32 v{2+r}, 0')
    regs = {}
    for cb in range(cfg.NB):
        for tb in range(cfg.TB):
            k, b = cfg.acc_plan(cb, tb)
            regs.setdefault(k, []).append(b)
    a.e('s_nop 1')
    for k, bs in regs.items():
        bs.sort()
        assert bs == list(range(bs[0], bs[0] + 4 * len(bs), 4)) and (4 * len(bs)) % 16 == 0
        for b in range(bs[0], bs[0] + 4 * len(bs), 16):
            a.e(f'v_mfma_f32_32x32x16_bf16 {k}[{b}:{b+15}], v[2:5], v[2:5], 0')

def fetch_acc(a, cfg, cb, tb, tmp):
    k, b = cfg.acc_plan(cb, tb)
    if k == 'v':
        return [b + r for r in range(4)]
    for r in range(4):
        a.e(f'v_accvgpr_read_b32 v{tmp+r}, a{b+r}')
    return [tmp + r for r in range(4)]

def gelu_group(a, regs, bias, r2pair, r2hi, tz):
    sel = 'op_sel:[0,1,0] op_sel_hi:[1,1,1]' if r2hi else 'op_sel_hi:[1,0,1]'
    n = len(regs)
    x = [f'v[{r}:{r+1}]' for r in regs]
    z = [f'v[{tz+2*i}:{tz+2*i+1}]' for i in range(n)]
    for i in range(n): a.e(f'v_pk_fma_f32 {x[i]}, {x[i]}, v[{r2pair}:{r2pair+1}], v[{bias[i]}:{bias[i]+1}] {sel}')
    for i in range(n): a.e(f'v_pk_mul_f32 {z[i]}, {x[i]}, {x[i]}')
    for i in range(n): a.e(f'v_pk_fma_f32 {z[i]}, {z[i]}, s[30:31], v[6:7]')
    for i in range(n): a.e(f'v_pk_mul_f32 {z[i]}, {z[i]}, {x[i]}')
    for i in range(2 * n): a.e(f'v_exp_f32 v{tz+i}, v{tz+i}')
    for i in range(n): a.e(f'v_pk_add_f32 {z[i]}, {z[i]}, 1.0 op_sel_hi:[1,0]')
    for i in range(2 * n): a.e(f'v_rcp_f32 v{tz+i}, v{tz+i}')
    for i in range(n): a.e(f'v_pk_mul_f32 {x[i]}, {x[i]}, {z[i]}')

def gen_k1(name='gemm1_kernel', att=ATT):
    a = Asm()
    kernel_header(a, name)
    prof_begin(a, name)
    a.e('s_cmp_ge_u32 s2, 256')
    a.e(f's_cbranch_scc1 L_{name}_end')
    a.e(f's_load_dwordx2 s[4:5], s[0:1], {ARG_WQKV}')
    a.e(f's_load_dwordx4 s[8:11], s[0:1], {ARG_W1}')
    a.e(f's_load_dwordx2 s[6:7], s[0:1], {ARG_WS}')
    FL = K1OPT['fuse_ln']
    if FL:
        a.e(f's_load_dwordx2 s[32:33], s[0:1], {ARG_X}')
        a.e(f's_load_dwordx2 s[34:35], s[0:1], {ARG_DBG}')
    ncp = prefetch_code(a, name, f'L_{name}_end', 63, 62)
    a.e('v_lshrrev_b32 v1, 6, v0')
    a.e('s_and_b32 s12, s2, 7')
    a.e('s_lshr_b32 s13, s2, 3')
    a.e(f'v_readfirstlane_b32 s{S_W}, v1')
    a.e('s_and_b32 s14, s13, 3')
    a.e('s_lshr_b32 s13, s13, 2')
    a.e('s_and_b32 s15, s12, 1')
    a.e('s_lshl_b32 s15, s15, 2')
    a.e('s_add_u32 s14, s14, s15')
    a.e('s_lshr_b32 s12, s12, 1')
    a.e('s_lshl_b32 s16, s14, 4')
    a.e(f's_lshl_b32 s17, s{S_W}, 2')
    a.e('s_add_u32 s16, s16, s17')
    if FL:
        a.e('s_waitcnt lgkmcnt(0)')
        a.e(f's_lshl_b32 s{ln.LNI}, s14, 5')
        a.e('s_lshl_b32 s17, s12, 3')
        a.e(f's_add_u32 s{ln.LNI}, s{ln.LNI}, s17')
        a.e(f's_add_u32 s{ln.LNI}, s{ln.LNI}, s13')
        srd(a, 76, 32, 4*MB)
        ln.ln_issue_loads(a, 76)
        srd(a, 76, 6, 0x20000, WS_FLAGS)
        ln.ln_clear_go(a, 76)
    a.e('s_cmp_lt_u32 s13, 3')
    a.e(f's_cbranch_scc1 L_{name}_qkv')
    a.e('s_cmp_lt_u32 s13, 7')
    a.e(f's_cbranch_scc1 L_{name}_w12')
    a.e(f's_branch L_{name}_w8')

    def clear_flags(pf=False):
        a.e(f's_add_u32 s68, s6, {hex(WS_FLAGS)}')
        a.e('s_addc_u32 s69, s7, 0')
        a.e('s_and_b32 s69, s69, 0xffff')
        a.e('s_mov_b32 s70, 0x20000')
        a.e('s_mov_b32 s71, 0x20000')
        a.e('s_lshl_b32 s72, s2, 7')
        a.e('s_add_u32 s72, s72, 0x10000')
        a.e('v_mov_b32 v5, s72')
        a.e('s_lshl_b32 s72, s2, 6')
        a.e('s_add_u32 s72, s72, 4096')
        a.e('s_and_b32 s73, s2, 7')
        a.e('s_lshl_b32 s73, s73, 7')
        a.e('v_mov_b32 v2, 0')
        a.e('v_mov_b32 v3, s72')
        a.e('v_mov_b32 v4, s73')
        a.e('buffer_store_dword v2, v3, s[68:71], 0 offen')
        a.e('buffer_store_dword v2, v4, s[68:71], 0 offen')
        a.e('buffer_store_dword v2, v5, s[68:71], 0 offen')
        if PF['k1'] and pf:
            a.e(f's_load_dwordx2 s[74:75], s[0:1], {ARG_W2}')
            a.e(f's_load_dwordx2 s[76:77], s[0:1], {ARG_WO}')
            a.e('s_waitcnt lgkmcnt(0)')
            a.e('s_and_b32 s73, s2, 31')
            prefetch_lines(a, 68, 74, 3584*1024*2, 73, 32, 2, 3, 72, junk=1)
            prefetch_lines(a, 68, 76, 1024*1024*2, 73, 32, 2, 3, 72, junk=1)

    def x_offsets(eng):
        a.e('v_and_b32 v2, 63, v0')
        a.e(f'v_lshlrev_b32 v{eng.vXo[0]}, 4, v2')
        for tb in range(1, eng.cfg.TB):
            a.e(f'v_add_u32 v{eng.vXo[tb]}, {32768 * tb}, v{eng.vXo[0]}')

    def x_srd():
        a.e('s_lshl_b32 s17, s16, 15')
        a.e(f's_add_u32 s17, s17, {WS_XN}') if WS_XN else None
        a.e(f's_add_u32 s{SRD_X}, s6, s17')
        a.e(f's_addc_u32 s{SRD_X+1}, s7, 0')
        a.e(f's_and_b32 s{SRD_X+1}, s{SRD_X+1}, 0xffff')
        a.e(f's_mov_b32 s{SRD_X+2}, {4 * 32768}')
        a.e(f's_mov_b32 s{SRD_X+3}, 0x20000')

    def ln_part1(eng, label, cfg):
        srd(a, 68, 6, 4*MB, WS_XN)
        srd(a, 60, 6, 8192, WS_R2)
        srd(a, 72, 34, 256)
        ln.ln_compute_and_publish(a, 1 + K1OPT['wsplit'] * cfg.Q, 68, 60, 72, S_W)
        ln.ln_signal(a, f'L_{label}_ln', 72, S_W)
    def ln_part2(eng, label, cfg):
        eng.setup_tr(vt=2)
        zero_acc_mfma(a, cfg)
        ln.ln_wait(a, f'L_{label}_ln', (K1OPT['wpro_ln'] - K1OPT['wsplit']) * cfg.Q, 76, S_W, poll)

    def w_srd(ptr, total_bytes):
        a.e(f's_add_u32 s{SRD_W}, s{ptr}, s18')
        a.e(f's_addc_u32 s{SRD_W+1}, s{ptr+1}, 0')
        a.e(f's_and_b32 s{SRD_W+1}, s{SRD_W+1}, 0xffff')
        a.e(f's_sub_u32 s{SRD_W+2}, {hex(total_bytes)}, s18')
        a.e(f's_mov_b32 s{SRD_W+3}, 0x20000')

    a.label(f'L_{name}_qkv')
    a.e('s_mul_i32 s19, s12, 3')
    a.e('s_add_u32 s19, s19, s13')
    a.e('s_lshl_b32 s18, s19, 9')
    a.e('s_lshr_b32 s20, s19, 2')
    a.e('s_and_b32 s21, s19, 3')
    a.e('s_lshl_b32 s21, s21, 3')
    a.e('s_cmp_eq_u32 s20, 2')
    a.e(f's_cbranch_scc1 L_{name}_v')

    for variant in ('qk', 'v'):
        if variant == 'v': a.label(f'L_{name}_v')
        plan, n_arch = acc_plan_factory(16, 4, 32)
        cfg = GemmCfg(f'{name}_{variant}', NB=16, TB=4, nsteps=32, swapped=(variant == 'qk'), kperm='nat',
                      wstride=6144, acc_plan=plan, XR=K1OPT['XR'])
        eng = GemmEngine(a, cfg, 8, 0, K1OPT['XR'] * 16)
        assert eng.vend <= 32, eng.vend
        x_offsets(eng)
        eng.setup_dma(vt=2)
        a.e('s_waitcnt lgkmcnt(0)')
        w_srd(4, 1024*3072*2)
        x_srd()
        def between():
            eng.setup_tr(vt=2)
            zero_acc(a, cfg)
        if FL:
            cfg.xflags = ' sc1'
            eng.emit(f'{name}_{variant}', w_pro=K1OPT['wpro_ln'], x_pro=K1OPT['XR'] - 1, w_landed=True, w_split=K1OPT['wsplit'],
                     mid_w=lambda: ln_part1(eng, f'{name}_{variant}', cfg), after_w=lambda: ln_part2(eng, f'{name}_{variant}', cfg))
        else:
            eng.emit(f'{name}_{variant}', between=between, w_pro=K1OPT['wpro'], x_pro=K1OPT['xpro'], rate=K1OPT['rate'])
        clear_flags()
        a.e('s_lshl_b32 s22, s20, 22')
        a.e(f's_add_u32 s22, s22, {WS_Q}')
        a.e('s_add_u32 s56, s6, s22')
        a.e('s_addc_u32 s57, s7, 0')
        a.e('s_and_b32 s57, s57, 0xffff')
        a.e(f's_mov_b32 s58, {4*MB}')
        a.e('s_mov_b32 s59, 0x20000')
        T = 8
        a.e('v_and_b32 v2, 63, v0')
        a.e('v_lshrrev_b32 v3, 4, v2')
        a.e('v_and_b32 v4, 15, v2')
        if variant == 'qk':
            if att == 16:
                a.e('v_lshlrev_b32 v5, 4, v2')
                a.e('s_lshl_b32 s17, s16, 10')
                a.e('v_add_u32 v5, s17, v5')
                voff = lambda tb: ('v5', tb * 1024)
            else:
                a.e('v_lshrrev_b32 v5, 1, v3')
                a.e('v_lshlrev_b32 v5, 10, v5')
                a.e('v_and_b32 v6, 1, v3')
                a.e('v_lshl_add_u32 v5, v6, 9, v5')
                a.e('s_lshr_b32 s17, s16, 1')
                a.e('s_lshl_b32 s17, s17, 11')
                a.e('v_add_u32 v5, s17, v5')
                a.e('v_lshlrev_b32 v6, 4, v4')
                a.e('v_add_u32 v6, v5, v6')
                a.e('v_add_u32 v7, 256, v6')
                a.e('s_cmp_eq_u32 s20, 0')
                a.e(f's_cbranch_scc1 L_{name}_qaddr')
                a.e('v_lshrrev_b32 v6, 3, v4')
                a.e('v_lshlrev_b32 v6, 8, v6')
                a.e('v_and_b32 v7, 7, v4')
                a.e('v_lshl_add_u32 v6, v7, 4, v6')
                a.e('v_add_u32 v6, v5, v6')
                a.e('v_add_u32 v7, 128, v6')
                a.label(f'L_{name}_qaddr')
                voff = lambda tb: (f'v{6 + (tb & 1)}', (tb >> 1) * 2048)
            a.e('s_cmp_eq_u32 s20, 0')
            a.e(f's_cselect_b32 s24, {fhex(QSCALE)}, 1.0')
            a.e('s_mov_b32 s25, s24')
            a.e('s_lshl_b32 s23, s21, 17')
            for hh in range(8):
                for tb in range(4):
                    r0 = fetch_acc(a, cfg, 2*hh, tb, T)
                    r1 = fetch_acc(a, cfg, 2*hh+1, tb, T+4)
                    d = T + 8 + 4 * tb
                    for p, r in enumerate((r0, r1)):
                        a.e(f'v_pk_mul_f32 v[{r[0]}:{r[1]}], v[{r[0]}:{r[1]}], s[24:25]')
                        a.e(f'v_pk_mul_f32 v[{r[2]}:{r[3]}], v[{r[2]}:{r[3]}], s[24:25]')
                    a.e(f'v_cvt_pk_bf16_f32 v{d}, v{r0[0]}, v{r0[1]}')
                    a.e(f'v_cvt_pk_bf16_f32 v{d+1}, v{r0[2]}, v{r0[3]}')
                    a.e(f'v_cvt_pk_bf16_f32 v{d+2}, v{r1[0]}, v{r1[1]}')
                    a.e(f'v_cvt_pk_bf16_f32 v{d+3}, v{r1[2]}, v{r1[3]}')
                    vo, imm = voff(tb)
                    a.e(f'buffer_store_dwordx4 v[{d}:{d+3}], {vo}, s[56:59], s23 offen offset:{imm}' + stf('k1'))
                a.e('s_add_u32 s23, s23, 131072')
        else:
            a.e('s_lshr_b32 s17, s16, 1')
            a.e('s_lshl_b32 s17, s17, 11')
            if att == 16:
                a.e('v_lshlrev_b32 v5, 4, v2')
                a.e('v_add_u32 v5, s17, v5')
                imm = lambda tp, c1: tp * 2048 + c1 * 1024
            else:
                a.e('v_lshrrev_b32 v5, 1, v3')
                a.e('v_lshlrev_b32 v5, 10, v5')
                a.e('v_and_b32 v6, 1, v3')
                a.e('v_lshl_add_u32 v5, v6, 9, v5')
                a.e('v_lshl_add_u32 v5, v4, 4, v5')
                a.e('v_add_u32 v5, s17, v5')
                imm = lambda tp, c1: tp * 2048 + c1 * 256
            a.e('s_lshl_b32 s23, s21, 17')
            for hh in range(8):
                for c1 in range(2):
                    for tp in range(2):
                        r0 = fetch_acc(a, cfg, 2*hh+c1, 2*tp, T)
                        r1 = fetch_acc(a, cfg, 2*hh+c1, 2*tp+1, T+4)
                        d = T + 8 + 4 * (2 * c1 + tp)
                        a.e(f'v_cvt_pk_bf16_f32 v{d}, v{r0[0]}, v{r0[1]}')
                        a.e(f'v_cvt_pk_bf16_f32 v{d+1}, v{r0[2]}, v{r0[3]}')
                        a.e(f'v_cvt_pk_bf16_f32 v{d+2}, v{r1[0]}, v{r1[1]}')
                        a.e(f'v_cvt_pk_bf16_f32 v{d+3}, v{r1[2]}, v{r1[3]}')
                        a.e(f'buffer_store_dwordx4 v[{d}:{d+3}], v5, s[56:59], s23 offen offset:{imm(tp, c1)}' + stf('k1'))
                a.e('s_add_u32 s23, s23, 131072')
        finish(a, name)

    for NB in (12, 8):
        a.label(f'L_{name}_w{NB}')
        if NB == 12:
            a.e('s_lshl_b32 s19, s12, 2')
            a.e('s_add_u32 s19, s19, s13')
            a.e('s_sub_u32 s19, s19, 3')
            a.e('s_mul_i32 s26, s19, 192')
        else:
            a.e('s_lshl_b32 s26, s12, 7')
            a.e('s_add_u32 s26, s26, 3072')
        a.e('s_lshl_b32 s18, s26, 1')
        plan, n_arch = acc_plan_factory(NB, 4, 64)
        cfg = GemmCfg(f'{name}_w{NB}', NB=NB, TB=4, nsteps=32, swapped=True, kperm='nat',
                      wstride=7168, acc_plan=plan, XR=K1OPT['XR'])
        eng = GemmEngine(a, cfg, 8, 0, K1OPT['XR'] * 16)
        assert eng.vend <= 32
        x_offsets(eng)
        eng.setup_dma(vt=2)
        a.e('s_waitcnt lgkmcnt(0)')
        w_srd(8, 1024*3584*2)
        x_srd()
        BR, R2 = 32, 56
        extra = []
        srd(a, 60, 6, 8192, WS_R2)
        srd(a, 64, 10, 3584*2)
        a.e('v_and_b32 v4, 15, v0')
        a.e('s_lshl_b32 s17, s16, 6')
        a.e('v_lshlrev_b32 v60, 2, v4')
        a.e('v_add_u32 v60, s17, v60')
        a.e('v_bfe_u32 v61, v0, 4, 2')
        a.e('v_lshlrev_b32 v61, 3, v61')
        a.e('v_add_u32 v61, s18, v61')
        for tb in range(4):
            extra.append(f'buffer_load_dword v{R2+tb}, v60, s[60:63], 0 offen offset:{64*tb}' + (' sc1' if FL else ''))
        for cb in range(NB):
            extra.append(f'buffer_load_dwordx2 v[{BR+2*cb}:{BR+2*cb+1}], v61, s[64:67], 0 offen offset:{32*cb}')
        def between():
            eng.setup_tr(vt=2)
            zero_acc(a, cfg)
        if FL:
            cfg.xflags = ' sc1'
            eng.emit(f'{name}_w{NB}', extra=extra, w_pro=K1OPT['wpro_ln'], x_pro=K1OPT['XR'] - 1, w_landed=True, w_split=K1OPT['wsplit'],
                     mid_w=lambda: ln_part1(eng, f'{name}_w{NB}', cfg), after_w=lambda: ln_part2(eng, f'{name}_w{NB}', cfg))
        else:
            eng.emit(f'{name}_w{NB}', between=between, extra=extra, w_pro=K1OPT['wpro'], x_pro=K1OPT['xpro'], rate=K1OPT['rate'])
        clear_flags(pf=(NB == 8))
        srd(a, 56, 6, 14*MB, WS_H)
        if ENG['g32']:
            a.e('v_and_b32 v2, 15, v0')
            a.e('v_lshlrev_b32 v5, 4, v2')
            a.e('v_bfe_u32 v2, v0, 4, 1')
            a.e('v_lshl_add_u32 v5, v2, 9, v5')
            a.e('v_bfe_u32 v2, v0, 5, 1')
            a.e('v_lshl_add_u32 v5, v2, 10, v5')
            a.e('s_lshr_b32 s17, s16, 1')
            a.e('s_mul_i32 s17, s17, 229376')
            a.e('s_lshl_b32 s27, s26, 6')
            a.e('s_add_u32 s17, s17, s27')
            a.e('v_add_u32 v5, s17, v5')
        else:
            a.e('v_and_b32 v2, 63, v0')
            a.e('v_lshlrev_b32 v5, 4, v2')
            a.e('s_mul_i32 s17, s16, 114688')
            a.e('s_lshl_b32 s27, s26, 5')
            a.e('s_add_u32 s17, s17, s27')
            a.e('v_add_u32 v5, s17, v5')
        C0 = -2.0 * (2.0 / 3.141592653589793) ** 0.5 * 1.4426950408889634
        C1 = C0 * 0.044715
        a.e(f's_mov_b32 s30, {fhex(C1)}')
        a.e(f's_mov_b32 s31, {fhex(C1)}')
        a.e(f'v_mov_b32 v6, {fhex(C0)}')
        a.e(f'v_mov_b32 v7, {fhex(C0)}')
        a.e('s_waitcnt vmcnt(0)')
        B, TZ, D = 8, 16, 24
        for i in range(NB // 2):
            for p in range(2):
                cb = 2 * i + p
                a.e(f'v_lshlrev_b32 v{B+4*p}, 16, v{BR+2*cb}')
                a.e(f'v_and_b32 v{B+4*p+1}, 0xffff0000, v{BR+2*cb}')
                a.e(f'v_lshlrev_b32 v{B+4*p+2}, 16, v{BR+2*cb+1}')
                a.e(f'v_and_b32 v{B+4*p+3}, 0xffff0000, v{BR+2*cb+1}')
            for tb in range(4):
                r0 = cfg.acc_plan(2*i, tb)[1]; r1 = cfg.acc_plan(2*i+1, tb)[1]
                regs = [r0, r0 + 2, r1, r1 + 2]
                gelu_group(a, regs, [B, B + 2, B + 4, B + 6], R2 + (tb & ~1), tb & 1, TZ)
                d = D + 4 * (tb & 1)
                for k, r in enumerate(regs):
                    a.e(f'v_cvt_pk_bf16_f32 v{d+k}, v{r}, v{r+1}')
                if ENG['g32']:
                    a.e(f's_mov_b32 s27, {(tb >> 1) * 229376 + i * 2048}')
                    a.e(f'buffer_store_dwordx4 v[{d}:{d+3}], v5, s[56:59], s27 offen offset:{(tb & 1) * 256}' + stf('k1'))
                else:
                    a.e(f's_mov_b32 s27, {tb * 114688 + i * 1024}')
                    a.e(f'buffer_store_dwordx4 v[{d}:{d+3}], v5, s[56:59], s27 offen' + stf('k1'))
        finish(a, name)
    a.label(f'L_{name}_end')
    finish(a, name)
    return a.text() + kernel_desc(name, 512, 256)
```

```python
from common import *
import common

OPT = dict(spread=True, prio=None, publish=False, force_safe=False)
vCUR, vNXT, vDMA = 1, 2, 3
Q0, K0, V0, SEL, LA, LB, PA, PB, SA, SB, OA, OB = 8, 24, 40, 56, 60, 64, 68, 76, 84, 100, 116, 132
SRD_K, SRD_V, SRD_Q, SRD_O = 8, 12, 16, 20
S_W, S_SOFF, S_M0, S_LOOP = 24, 25, 26, 27

def m32(d, a, b, c):
    return f'v_mfma_f32_32x32x16_bf16 v[{d}:{d+15}], v[{a}:{a+3}], v[{b}:{b+3}], ' + (f'v[{c}:{c+15}]' if c is not None else '0')
def m16(d, a, b):
    return f'v_mfma_f32_16x16x32_bf16 v[{d}:{d+3}], v[{a}:{a+3}], v[{b}:{b+3}], v[{d}:{d+3}]'

def phase(S, P, mf, extra):
    e = lambda i: f'v_exp_f32 v{S+i}, v{S+i}'
    c = lambda i: f'v_cvt_pk_bf16_f32 v{P+i}, v{S+2*i}, v{S+2*i+1}'
    seq = [mf[0], 'X0', e(0), e(1), e(2), mf[1], 'X1', e(3), e(4), c(0), e(5), mf[2], c(1), e(6), e(7), c(2),
           mf[3], e(8), mf[4], 'X2', e(9), c(3), e(10), e(11), mf[5], c(4), e(12), e(13), c(5), e(14), e(15), c(6), c(7)]
    out = []
    for s in seq:
        if s.startswith('X'):
            out += extra.get(s, [])
        else:
            out.append(s)
    return out

def attn_body(a, name, lds_base=0):
    a.e('s_and_b32 s29, s28, 7')
    a.e('s_lshr_b32 s30, s28, 3')
    a.e('s_lshr_b32 s31, s30, 3')
    a.e('s_lshl_b32 s29, s29, 2')
    a.e('s_add_u32 s29, s29, s31')
    a.e('s_and_b32 s30, s30, 7')
    a.e('v_lshrrev_b32 v4, 6, v0')
    a.e('v_and_b32 v5, 63, v0')
    a.e(f'v_readfirstlane_b32 s{S_W}, v4')
    a.e(f'v_lshlrev_b32 v{vCUR}, 4, v5')
    a.e('s_lshl_b32 s31, s29, 17')
    for srdn, off in ((SRD_K, WS_K), (SRD_V, WS_V), (SRD_Q, WS_Q)):
        a.e(f's_add_u32 s{srdn}, s4, {hex(off)}')
        a.e(f's_addc_u32 s{srdn+1}, s5, 0')
        a.e(f's_add_u32 s{srdn}, s{srdn}, s31')
        a.e(f's_addc_u32 s{srdn+1}, s{srdn+1}, 0')
        a.e(f's_and_b32 s{srdn+1}, s{srdn+1}, 0xffff')
        a.e(f's_mov_b32 s{srdn+2}, 0x20000')
        a.e(f's_mov_b32 s{srdn+3}, 0x20000')
    a.e('s_lshl_b32 s32, s30, 3')
    a.e(f's_lshl_b32 s33, s{S_W}, 1')
    a.e('s_add_u32 s32, s32, s33')
    a.e('s_lshl_b32 s33, s32, 11')
    for i in range(4):
        a.e(f'buffer_load_dwordx4 v[{Q0+4*i}:{Q0+4*i+3}], v{vCUR}, s[{SRD_Q}:{SRD_Q+3}], s33 offen offset:{1024*i}')
    a.e(f's_lshl_b32 s34, s{S_W}, 11')
    a.e(f'v_add_u32 v{vDMA}, s34, v{vCUR}')
    if lds_base: a.e(f's_add_u32 s34, s34, {lds_base}')
    a.e(f's_mov_b32 s{S_SOFF}, 0')
    a.e(f's_mov_b32 s{S_M0}, 0')
    def dma_piece(i):
        srd_ = SRD_K if i < 2 else SRD_V
        pre = []
        if i == 0: pre = [f's_add_u32 m0, s34, s{S_M0}']
        if i == 2: pre = ['s_add_u32 m0, m0, 8192']
        ld = f'buffer_load_dwordx4 v{vDMA}, s[{srd_}:{srd_+3}], s{S_SOFF} offen' + (' offset:1024' if i & 1 else '') + ' lds'
        post = []
        if i == 3: post = [f's_add_u32 s{S_M0}, s{S_M0}, 16384', f's_and_b32 s{S_M0}, s{S_M0}, 0xffff', f's_add_u32 s{S_SOFF}, s{S_SOFF}, 8192']
        return pre, ld, post
    def dma_stage():
        out = []
        for i in range(4):
            pre, ld, post = dma_piece(i)
            out += pre + (['s_nop 0'] if pre else []) + [ld] + post
        return out
    if OPT['spread']:
        for st in range(2):
            for l in dma_stage(): a.e(l)
        pre, ld, post = dma_piece(0)
        for l in pre + ['s_nop 0', ld]: a.e(l)
    else:
        for st in range(3):
            for l in dma_stage(): a.e(l)
    if lds_base: a.e(f'v_add_u32 v{vCUR}, {lds_base}, v{vCUR}')
    a.e(f'v_add_u32 v{vNXT}, 16384, v{vCUR}')
    a.e('v_lshrrev_b32 v4, 4, v5')
    a.e('v_lshrrev_b32 v6, 2, v5')
    a.e('v_xor_b32 v4, v4, v6')
    a.e('v_and_b32 v4, 1, v4')
    a.e('v_cmp_eq_u32 vcc, 0, v4')
    a.e('v_mov_b32 v6, 0x3f803f80')
    a.e('s_nop 0')
    a.e(f'v_cndmask_b32 v{SEL}, 0, v6, vcc')
    for r in range(1, 4): a.e(f'v_mov_b32 v{SEL+r}, v{SEL}')
    for r in range(LA, LA + 8): a.e(f'v_mov_b32 v{r}, 0')
    for r in range(PB, PB + 8): a.e(f'v_mov_b32 v{r}, 0')
    for r in range(OA, OA + 32): a.e(f'v_mov_b32 v{r}, 0')
    for r in range(V0 + 8, V0 + 16): a.e(f'v_mov_b32 v{r}, 0')
    prof_mark(a, 0)
    a.e('s_waitcnt vmcnt(5)' if OPT['spread'] else 's_waitcnt vmcnt(8)')
    if OPT['prio'] is not None: a.e(f's_setprio {OPT["prio"]}')
    a.e('s_barrier')
    prof_mark(a, 1)
    kset = lambda n: K0 + 8 * (n & 1)
    vset = lambda n: V0 + 8 * (n & 1)
    a.e(f'ds_read_b128 v[{K0}:{K0+3}], v{vCUR}')
    a.e(f'ds_read_b128 v[{K0+4}:{K0+7}], v{vCUR} offset:1024')
    a.e('s_waitcnt lgkmcnt(0)')
    a.e(m32(SA, K0, Q0, None))
    a.e(m32(SA, K0 + 4, Q0 + 4, SA))
    a.e('s_nop 7'); a.e('s_nop 3')
    a.e(f's_mov_b32 s{S_LOOP}, 16')
    a.raw('.p2align 4')
    a.label(f'L_{name}_loop')
    for n in range(4):
        kn, vn = kset(n + 1), vset(n)
        rd = []
        if n == 3:
            rd += ['s_waitcnt vmcnt(4)', 's_barrier']
            rd += [f'ds_read_b128 v[{kn}:{kn+3}], v{vNXT}', f'ds_read_b128 v[{kn+4}:{kn+7}], v{vNXT} offset:1024']
        else:
            o = (n + 1) * 2048
            rd += [f'ds_read_b128 v[{kn}:{kn+3}], v{vCUR} offset:{o}', f'ds_read_b128 v[{kn+4}:{kn+7}], v{vCUR} offset:{o+1024}']
        o = 8192 + n * 2048
        rd2 = [f'ds_read_b128 v[{vn}:{vn+3}], v{vCUR} offset:{o}', f'ds_read_b128 v[{vn+4}:{vn+7}], v{vCUR} offset:{o+1024}']
        exB = {}
        if OPT['spread']:
            pre, ld, post = dma_piece((n + 1) & 3)
            rd2 = rd2 + pre
            exB['mid'] = [ld] + post
        elif n == 3: rd2 += dma_stage()
        k, v = kset(n), vset(n - 1)
        mf = [m32(SB, k, Q0 + 8, None), m32(SB, k + 4, Q0 + 12, SB),
              m32(OB, v, PB, OB), m16(LB, SEL, PB), m32(OB, v + 4, PB + 4, OB), m16(LB, SEL, PB + 4)]
        for l in phase(SA, PA, mf, {'X0': rd, 'X1': rd2, 'X2': exB.get('mid', [])}): a.e(l)
        k, v = kset(n + 1), vset(n)
        mf = [m32(SA, k, Q0, None), m32(SA, k + 4, Q0 + 4, SA),
              m32(OA, v, PA, OA), m16(LA, SEL, PA), m32(OA, v + 4, PA + 4, OA), m16(LA, SEL, PA + 4)]
        a.e('s_waitcnt lgkmcnt(2)')
        ex = {'X1': ['s_waitcnt lgkmcnt(0)']}
        if n == 3:
            ex['X0'] = [f'v_mov_b32 v{vCUR}, v{vNXT}', f'v_add_u32 v{vNXT}, 16384, v{vNXT}']
            if lds_base:
                ex['X0'] += [f'v_subrev_u32 v{vNXT}, {lds_base}, v{vNXT}', f'v_and_b32 v{vNXT}, 0xffff, v{vNXT}', f'v_add_u32 v{vNXT}, {lds_base}, v{vNXT}']
            else:
                ex['X0'] += [f'v_and_b32 v{vNXT}, 0xffff, v{vNXT}']
        for l in phase(SB, PB, mf, ex): a.e(l)
    a.e(f's_sub_u32 s{S_LOOP}, s{S_LOOP}, 1')
    a.e(f's_cmp_lg_u32 s{S_LOOP}, 0')
    a.e(f's_cbranch_scc1 L_{name}_loop')
    v = vset(63)
    a.e('s_nop 1')
    a.e(m32(OB, v, PB, OB)); a.e(m16(LB, SEL, PB)); a.e(m32(OB, v + 4, PB + 4, OB)); a.e(m16(LB, SEL, PB + 4))
    prof_mark(a, 2)
    a.e('s_waitcnt vmcnt(0)')
    a.e('s_nop 7'); a.e('s_nop 7')
    a.e('v_mov_b32 v4, 0')
    for r in range(OA, OA + 32): a.e(f'v_fma_f32 v4, v{r}, 0, v4')
    a.e(f's_mov_b32 s38, {fhex(2.0 ** -20)}')
    a.e(f's_mov_b32 s39, {fhex(2.0 ** 100)}')
    a.e('v_cmp_eq_f32 s[40:41], 0, v4')
    a.e(f'v_cmp_le_f32 s[42:43], s38, v{LA}')
    a.e(f'v_cmp_ge_f32 s[44:45], s39, v{LA}')
    a.e(f'v_cmp_le_f32 s[46:47], s38, v{LB}')
    a.e(f'v_cmp_ge_f32 s[48:49], s39, v{LB}')
    a.e('s_nop 3')
    a.e('s_and_b64 s[40:41], s[40:41], s[42:43]')
    a.e('s_and_b64 s[44:45], s[44:45], s[46:47]')
    a.e('s_and_b64 s[40:41], s[40:41], s[48:49]')
    a.e('s_and_b64 s[40:41], s[40:41], s[44:45]')
    a.e('s_cmp_eq_u64 s[40:41], -1')
    a.e('s_cselect_b32 s38, 0, 1')
    if OPT['force_safe']: a.e('s_mov_b32 s38, 1')
    a.e(f's_lshl_b32 s39, s{S_W}, 2')
    a.e(f's_add_u32 s39, s39, {lds_base + 65536}')
    a.e('v_mov_b32 v4, s39')
    a.e('v_mov_b32 v5, s38')
    a.e('ds_write_b32 v4, v5')
    a.e(f'v_mov_b32 v4, {lds_base + 65536}')
    a.e('s_waitcnt lgkmcnt(0)')
    a.e('s_barrier')
    a.e(f'ds_read_b128 v[{K0}:{K0+3}], v4')
    a.e('s_waitcnt lgkmcnt(0)')
    a.e(f'v_or_b32 v{K0}, v{K0}, v{K0+1}')
    a.e(f'v_or_b32 v{K0+2}, v{K0+2}, v{K0+3}')
    a.e(f'v_or_b32 v{K0}, v{K0}, v{K0+2}')
    a.e('s_nop 0')
    a.e(f'v_readfirstlane_b32 s38, v{K0}')
    a.e('s_nop 1')
    a.e('s_cmp_lg_u32 s38, 0')
    a.e(f's_cbranch_scc1 L_{name}_safe')
    a.label(f'L_{name}_epi')
    a.e(f'v_rcp_f32 v{LA}, v{LA}')
    a.e(f'v_rcp_f32 v{LB}, v{LB}')
    if ENG['g32']:
        a.e('v_and_b32 v4, 63, v0')
        a.e('v_lshlrev_b32 v4, 4, v4')
        a.e('s_lshl_b32 s33, s32, 16')
        a.e('s_lshl_b32 s35, s29, 11')
        a.e('s_add_u32 s33, s33, s35')
        a.e('s_add_u32 s35, s33, 65536')
    else:
        a.e('v_and_b32 v5, 63, v0')
        a.e('v_and_b32 v4, 15, v5')
        a.e('v_lshlrev_b32 v4, 4, v4')
        a.e('v_bfe_u32 v6, v5, 4, 1')
        a.e('v_lshl_add_u32 v4, v6, 15, v4')
        a.e('v_lshrrev_b32 v6, 5, v5')
        a.e('v_lshl_add_u32 v4, v6, 9, v4')
        a.e('s_lshl_b32 s33, s32, 16')
        a.e('s_lshl_b32 s35, s29, 10')
        a.e('s_add_u32 s33, s33, s35')
        a.e('s_add_u32 s35, s33, 65536')
    a.e(f's_add_u32 s{SRD_O}, s4, {hex(WS_O)}')
    a.e(f's_addc_u32 s{SRD_O+1}, s5, 0')
    a.e(f's_and_b32 s{SRD_O+1}, s{SRD_O+1}, 0xffff')
    a.e(f's_mov_b32 s{SRD_O+2}, {hex(4*MB)}')
    a.e(f's_mov_b32 s{SRD_O+3}, 0x20000')
    for (O, L, so) in ((OA, LA, 's33'), (OB, LB, 's35')):
        for r in range(16):
            a.e(f'v_mul_f32 v{O+r}, v{O+r}, v{L}')
        for s in range(2):
            d = SA + 4 * s + (0 if O == OA else 8)
            for j in range(4):
                a.e(f'v_cvt_pk_bf16_f32 v{d+j}, v{O+8*s+2*j}, v{O+8*s+2*j+1}')
            a.e(f'buffer_store_dwordx4 v[{d}:{d+3}], v4, s[{SRD_O}:{SRD_O+3}], {so} offen offset:{(1024 if ENG["g32"] else 256)*s}' + (' sc1' if OPT['publish'] else stf('mid')))

def attn_safe_path(a, name, lds_base=0):
    MA, MB, T = 148, 149, 150
    a.label(f'L_{name}_safe')
    for r in range(LA, LA + 8): a.e(f'v_mov_b32 v{r}, 0')
    for r in range(OA, OA + 32): a.e(f'v_mov_b32 v{r}, 0')
    a.e(f'v_mov_b32 v{MA}, 0xff800000')
    a.e(f'v_mov_b32 v{MB}, 0xff800000')
    a.e(f's_mov_b32 s{S_SOFF}, 0')
    a.label(f'L_{name}_sstage')
    a.e('s_barrier')
    a.e('s_mov_b32 m0, s34')
    a.e('s_nop 0')
    a.e(f'buffer_load_dwordx4 v{vDMA}, s[{SRD_K}:{SRD_K+3}], s{S_SOFF} offen lds')
    a.e(f'buffer_load_dwordx4 v{vDMA}, s[{SRD_K}:{SRD_K+3}], s{S_SOFF} offen offset:1024 lds')
    a.e('s_add_u32 m0, s34, 8192')
    a.e('s_nop 0')
    a.e(f'buffer_load_dwordx4 v{vDMA}, s[{SRD_V}:{SRD_V+3}], s{S_SOFF} offen lds')
    a.e(f'buffer_load_dwordx4 v{vDMA}, s[{SRD_V}:{SRD_V+3}], s{S_SOFF} offen offset:1024 lds')
    a.e('s_waitcnt vmcnt(0)')
    a.e('s_barrier')
    a.e(f'v_and_b32 v{vCUR}, 63, v0')
    a.e(f'v_lshlrev_b32 v{vCUR}, 4, v{vCUR}')
    if lds_base: a.e(f'v_add_u32 v{vCUR}, {lds_base}, v{vCUR}')
    a.e(f's_mov_b32 s{S_LOOP}, 4')
    a.label(f'L_{name}_sblk')
    a.e(f'ds_read_b128 v[{K0}:{K0+3}], v{vCUR}')
    a.e(f'ds_read_b128 v[{K0+4}:{K0+7}], v{vCUR} offset:1024')
    a.e(f'ds_read_b128 v[{V0}:{V0+3}], v{vCUR} offset:8192')
    a.e(f'ds_read_b128 v[{V0+4}:{V0+7}], v{vCUR} offset:9216')
    a.e('s_waitcnt lgkmcnt(0)')
    for (S, P, O, L, M, q) in ((SA, PA, OA, LA, MA, Q0), (SB, PB, OB, LB, MB, Q0 + 8)):
        a.e(m32(S, K0, q, None))
        a.e(m32(S, K0 + 4, q + 4, S))
        a.e('s_nop 15'); a.e('s_nop 3')
        a.e(f'v_max_f32 v{T}, v{S}, v{S+1}')
        for r in range(2, 16, 2): a.e(f'v_max3_f32 v{T}, v{S+r}, v{S+r+1}, v{T}')
        a.e(f'v_mov_b32 v{T+1}, v{T}')
        a.e('s_nop 1')
        a.e(f'v_permlane32_swap_b32 v{T}, v{T+1}')
        a.e('s_nop 1')
        a.e(f'v_max3_f32 v{T}, v{T}, v{T+1}, v{M}')
        a.e(f'v_sub_f32 v{T+1}, v{M}, v{T}')
        a.e(f'v_exp_f32 v{T+1}, v{T+1}')
        a.e(f'v_mov_b32 v{M}, v{T}')
        for r in range(16): a.e(f'v_sub_f32 v{S+r}, v{S+r}, v{T}')
        for r in range(16): a.e(f'v_exp_f32 v{S+r}, v{S+r}')
        for r in range(16): a.e(f'v_mul_f32 v{O+r}, v{O+r}, v{T+1}')
        for r in range(4): a.e(f'v_mul_f32 v{L+r}, v{L+r}, v{T+1}')
        for i in range(8): a.e(f'v_cvt_pk_bf16_f32 v{P+i}, v{S+2*i}, v{S+2*i+1}')
        a.e('s_nop 1')
        a.e(m32(O, V0, P, O)); a.e(m16(L, SEL, P)); a.e(m32(O, V0 + 4, P + 4, O)); a.e(m16(L, SEL, P + 4))
        a.e('s_nop 15'); a.e('s_nop 3')
    a.e(f'v_add_u32 v{vCUR}, 2048, v{vCUR}')
    a.e(f's_sub_u32 s{S_LOOP}, s{S_LOOP}, 1')
    a.e(f's_cmp_lg_u32 s{S_LOOP}, 0')
    a.e(f's_cbranch_scc1 L_{name}_sblk')
    a.e(f's_add_u32 s{S_SOFF}, s{S_SOFF}, 8192')
    a.e(f's_cmp_lt_u32 s{S_SOFF}, 0x20000')
    a.e(f's_cbranch_scc1 L_{name}_sstage')
    a.e(f's_branch L_{name}_epi')

def attn_publish(a):
    a.e('s_waitcnt vmcnt(0)')
    a.e('s_barrier')
    a.e(f's_cmp_lg_u32 s{S_W}, 0')
    a.e('s_cbranch_scc1 L_attn_pub_done')
    a.e(f's_add_u32 s8, s4, {hex(WS_FLAGS)}')
    a.e('s_addc_u32 s9, s5, 0')
    a.e('s_and_b32 s9, s9, 0xffff')
    a.e('s_mov_b32 s10, 0x20000')
    a.e('s_mov_b32 s11, 0x20000')
    a.e('s_lshl_b32 s31, s30, 7')
    a.e('v_mov_b32 v4, s31')
    a.e('v_mov_b32 v5, 1')
    a.e('s_mov_b64 s[36:37], exec')
    a.e('s_mov_b64 exec, 1')
    a.e('buffer_atomic_add v5, v4, s[8:11], 0 offen sc0 sc1')
    a.e('s_waitcnt vmcnt(0)')
    a.e('s_mov_b64 exec, s[36:37]')
    a.e('v_readfirstlane_b32 s31, v5')
    a.e('s_nop 1')
    a.e('s_cmp_eq_u32 s31, 31')
    a.e('s_cbranch_scc0 L_attn_pub_done')
    a.e('v_and_b32 v4, 1, v0')
    a.e('v_bfe_u32 v5, v0, 1, 1')
    a.e('v_bfe_u32 v6, v0, 2, 3')
    a.e('v_lshl_add_u32 v5, v6, 2, v5')
    a.e('v_lshl_add_u32 v4, v5, 3, v4')
    a.e('s_lshr_b32 s31, s30, 1')
    a.e('s_lshl_b32 s31, s31, 1')
    a.e('s_and_b32 s35, s30, 1')
    a.e('s_lshl_b32 s35, s35, 4')
    a.e('s_add_u32 s31, s31, s35')
    a.e('v_add_u32 v4, s31, v4')
    a.e('v_lshlrev_b32 v4, 7, v4')
    a.e('v_add_u32 v4, 0x10000, v4')
    a.e('v_mov_b32 v5, 1')
    a.e('s_mov_b32 exec_hi, 0')
    a.e('buffer_store_dword v5, v4, s[8:11], 0 offen sc1')
    a.e('s_mov_b64 exec, s[36:37]')
    a.label('L_attn_pub_done')

def gen_attn(name='attn_kernel'):
    a = Asm()
    kernel_header(a, name)
    prof_begin(a, name)
    a.e('s_cmp_ge_u32 s2, 256')
    a.e(f's_cbranch_scc1 L_{name}_end')
    a.e(f's_load_dwordx2 s[4:5], s[0:1], {ARG_WS}')
    a.e('s_mov_b32 s28, s2')
    a.e('s_waitcnt lgkmcnt(0)')
    attn_body(a, name)
    a.e(f's_branch L_{name}_end')
    attn_safe_path(a, name)
    a.label(f'L_{name}_end')
    finish(a, name)
    return a.text() + kernel_desc(name, 160, 160)
```

```python
from common import *
import common
import k2_attn, k2_gemm2
from k2_attn import attn_body, attn_publish, attn_safe_path
from k2_gemm2 import gemm2_body

def gen_k2(name='mid_kernel', order='attn_first'):
    fused = k2_gemm2.G2OPT['fused']
    k2_attn.OPT['publish'] = fused
    a = Asm()
    kernel_header(a, name)
    prof_begin(a, name)
    a.e('s_cmp_ge_u32 s2, 512')
    a.e(f's_cbranch_scc1 L_{name}_end')
    a.e(f's_load_dwordx2 s[4:5], s[0:1], {ARG_WS}')
    a.e(f's_load_dwordx2 s[6:7], s[0:1], {ARG_W2}')
    if fused:
        a.e(f's_load_dwordx2 s[60:61], s[0:1], {ARG_WO}')
        a.e(f's_load_dwordx2 s[62:63], s[0:1], {ARG_X}')
        a.e(f's_load_dwordx4 s[64:67], s[0:1], {ARG_B2}')
    prefetch_code(a, name, f'L_{name}_end', 7, 6)
    a.e('s_and_b32 s28, s2, 255')
    a.e('s_cmp_ge_u32 s2, 256')
    a.e('s_waitcnt lgkmcnt(0)')
    a.e(f's_cbranch_scc1 L_{name}_gemm')
    attn_body(a, name + '_a')
    if fused: attn_publish(a)
    a.e(f's_branch L_{name}_end')
    attn_safe_path(a, name + '_a')
    a.label(f'L_{name}_gemm')
    gemm2_body(a, name + '_g')
    a.label(f'L_{name}_end')
    finish(a, name)
    return a.text() + kernel_desc(name, 256, 256)
```

```python
from common import *
import common
from gemm import *
import gemm

G2OPT = dict(nobar=False, prio=None, fused=True, setup_prio=None, XR=8, att=32, pdelay=3, tstart=18, sstart=0, sdelay=10, wo_wpro=7, osc1=True, noexch=False, ts_inloop=True, send_first=True)

def poll(a, label, srd_, voff_reg, need, tmp_v, tmp_s, cnt_s):
    a.e(f's_mov_b32 s{cnt_s}, 0x400000')
    a.label(label)
    a.e(f'buffer_load_dword v{tmp_v}, v{voff_reg}, s[{srd_}:{srd_+3}], 0 offen sc1')
    a.e('s_waitcnt vmcnt(0)')
    a.e(f'v_readfirstlane_b32 s{tmp_s}, v{tmp_v}')
    a.e(f's_sub_u32 s{cnt_s}, s{cnt_s}, 1')
    a.e(f's_cbranch_scc1 {label}_out')
    a.e(f's_cmp_ge_u32 s{tmp_s}, {need}')
    a.e(f's_cbranch_scc1 {label}_out')
    a.e('s_sleep 2')
    a.e(f's_branch {label}')
    a.label(f'{label}_out')

def gemm2_body(a, name, lds_base=0):
    if not ENG['g32']: return gemm2_body16(a, name, lds_base)
    return gemm2_body32(a, name, lds_base)

def gemm2_body32(a, name, lds_base=0):
    if G2OPT['setup_prio'] is not None: a.e(f's_setprio {G2OPT["setup_prio"]}')
    a.e('s_and_b32 s12, s28, 7')
    a.e('s_lshr_b32 s13, s28, 3')
    a.e('s_and_b32 s14, s12, 1')
    a.e('s_lshr_b32 s12, s12, 1')
    a.e('s_lshl_b32 s12, s12, 2')
    a.e('s_and_b32 s15, s13, 3')
    a.e('s_add_u32 s12, s12, s15')
    a.e('s_lshr_b32 s13, s13, 2')
    a.e('v_lshrrev_b32 v1, 6, v0')
    a.e('s_nop 0')
    a.e(f'v_readfirstlane_b32 s{S_W}, v1')
    srd(a, SRD_X, 4, 14*MB, WS_H)
    a.e(f's_mul_i32 s18, s14, {1792*2048}')
    a.e('s_lshl_b32 s19, s13, 8')
    a.e('s_add_u32 s18, s18, s19')
    a.e(f's_add_u32 s{SRD_W}, s6, s18')
    a.e(f's_addc_u32 s{SRD_W+1}, s7, 0')
    a.e(f's_and_b32 s{SRD_W+1}, s{SRD_W+1}, 0xffff')
    a.e(f's_sub_u32 s{SRD_W+2}, {hex(1792*2048)}, s19')
    a.e(f's_mov_b32 s{SRD_W+3}, 0x20000')
    cfg = Gemm32Cfg(name, CT=4, nsteps=56, kperm='id', wstride=2048, acc_base=64)
    eng = Gemm32Engine(a, cfg, 8, 128, 160)
    assert eng.vend <= 15
    a.e('s_lshl_b32 s16, s12, 2')
    a.e(f's_add_u32 s16, s16, s{S_W}')
    a.e('v_and_b32 v2, 63, v0')
    a.e('v_lshlrev_b32 v2, 4, v2')
    a.e('s_mul_i32 s19, s14, 114688')
    a.e('s_mul_i32 s17, s16, 229376')
    a.e('s_add_u32 s17, s17, s19')
    a.e(f'v_add_u32 v{eng.vXo[0]}, s17, v2')
    a.e('s_lshl_b32 s19, s14, 7')
    eng.setup_dma(vt=2, lds_base=lds_base, xor_bytes=19)
    SEND, PART, MYF, PARF, REL, XO, POLL, ONE = 20, 21, 22, 23, 24, 25, 27, 28
    SACC, XX, BB, PP = 32, 224, 240, 96
    XR = G2OPT['XR']
    cfg2 = Gemm32Cfg(name + '_o', CT=2, nsteps=32, kperm='sw34', wstride=2048, acc_base=SACC, R=16, XR=XR, unroll=16)
    cfg2.xflags = ' sc1' if G2OPT['osc1'] else ''
    eng2 = Gemm32Engine(a, cfg2, 15, 160, 128, sregs=dict(xoff=25, woff=26, m0b=27, srdx=72, srdw=76))
    assert eng2.vend <= 20
    a.e('s_lshl_b32 s23, s13, 1')
    a.e('s_add_u32 s23, s23, s14')
    a.e('s_lshl_b32 s18, s23, 7')
    srd(a, 72, 62, 4*MB)
    srd(a, 76, 64, 2048)
    a.e('v_and_b32 v3, 31, v0')
    a.e('v_lshlrev_b32 v3, 11, v3')
    a.e('v_bfe_u32 v4, v0, 5, 1')
    a.e('v_lshl_add_u32 v3, v4, 3, v3')
    a.e('s_lshl_b32 s17, s16, 16')
    a.e('s_add_u32 s17, s17, s18')
    a.e(f'v_add_u32 v{XO}, s17, v3')
    a.e('v_lshlrev_b32 v4, 3, v4')
    a.e('v_add_u32 v29, s18, v4')
    extra = []
    for i in range(8):
        extra.append(f'buffer_load_dwordx2 v[{XX+2*i}:{XX+2*i+1}], v{XO}, s[72:75], 0 offen offset:{(i >> 2) * 64 + (i & 3) * 16}')
    for i in range(8):
        extra.append(f'buffer_load_dwordx2 v[{BB+2*i}:{BB+2*i+1}], v29, s[76:79], 0 offen offset:{(i >> 2) * 64 + (i & 3) * 16}')
    def between():
        eng.setup_tr(vt=2)
        for r in range(64, 128): a.e(f'v_mov_b32 v{r}, 0')
        if G2OPT['setup_prio'] is not None: a.e(f's_setprio {G2OPT["prio"] or 0}')
    def tail_setup():
        b = Asm()
        for r in range(SACC, SACC + 32): b.e(f'v_mov_b32 v{r}, 0')
        srd(b, 56, 4, 8*MB, WS_PX)
        srd(b, 68, 4, 0x20000, WS_FLAGS)
        srd(b, 32, 66, 4*MB)
        b.e('s_lshl_b32 s17, s28, 15')
        b.e(f's_lshl_b32 s19, s{S_W}, 13')
        b.e('s_add_u32 s20, s17, s19')
        b.e('s_xor_b32 s21, s20, 0x8000')
        b.e('v_and_b32 v2, 63, v0')
        b.e('v_lshlrev_b32 v2, 4, v2')
        b.e(f'v_add_u32 v{SEND}, s20, v2')
        b.e(f'v_add_u32 v{PART}, s21, v2')
        b.e('s_mov_b32 s22, 4096')
        b.e('s_lshl_b32 s17, s28, 6')
        b.e('s_add_u32 s17, s17, 4096')
        b.e(f'v_mov_b32 v{MYF}, s17')
        b.e('s_xor_b32 s17, s17, 64')
        b.e(f'v_mov_b32 v{PARF}, s17')
        b.e('s_lshl_b32 s17, s28, 7')
        b.e('s_add_u32 s17, s17, 0x10000')
        b.e(f'v_mov_b32 v{REL}, s17')
        b.e(f'v_mov_b32 v{ONE}, 1')
        srd(b, 72, 4, 4*MB, WS_O)
        b.e('s_add_u32 s76, s60, s18')
        b.e('s_addc_u32 s77, s61, 0')
        b.e('s_and_b32 s77, s77, 0xffff')
        b.e(f's_sub_u32 s78, {hex(1024*1024*2)}, s18')
        b.e('s_mov_b32 s79, 0x20000')
        b.e('s_lshl_b32 s17, s16, 16')
        b.e(f'v_add_u32 v{eng2.vXo[0]}, s17, v2')
        keep = eng2.a; eng2.a = b
        eng2.setup_dma(vt=2, lds_base=lds_base)
        eng2.setup_tr(vt=2)
        eng2.a = keep
        return [l.strip() for l in b.L]
    if G2OPT['prio'] is not None and G2OPT['setup_prio'] is None: a.e(f's_setprio {G2OPT["prio"]}')
    gemm.GOPT['nobar'] = G2OPT['nobar']
    inj = {53: [[(f'buffer_load_dword v{POLL}, v{REL}, s[68:71], 0 offen sc1', ('e', 5))]]}
    ts = tail_setup()
    if G2OPT['ts_inloop']:
        groups = []; cur = []
        for l in ts:
            cur.append((l, None))
            if len(cur) >= 6 and not l.startswith('s_add_u32'):
                groups.append(cur); cur = []
        if cur: groups.append(cur)
        for gi, g in enumerate(groups):
            inj.setdefault(2 + gi * 5 // len(groups), []).append(g)
    else:
        old_between = between
        def between():
            old_between()
            for l in ts: a.e(l)
    eng.emit(name, between=between, extra=extra, w_pro=2, x_pro=2, overrun=False, inject=inj)
    gemm.GOPT['nobar'] = False
    a.e('s_waitcnt vmcnt(0)')
    a.e('s_barrier')
    sent = G2OPT['send_first']
    def send_lines():
        return [f'buffer_store_dwordx4 v[{96+4*i}:{96+4*i+3}], v{SEND}, s[56:59], {"s22" if i >= 4 else "0"} offen offset:{(i%4)*1024} sc1' for i in range(8)]
    if sent:
        a.e('s_nop 7')
        for l in send_lines(): a.e(l)
    a.e(f'v_readfirstlane_b32 s17, v{POLL}')
    a.e('s_nop 1')
    a.e('s_cmp_ge_u32 s17, 1')
    a.e(f's_cbranch_scc1 L_{name}_pa_out')
    poll(a, f'L_{name}_pa', 68, REL, 1, POLL, 17, 19)
    prof_mark(a, 3)
    publish = [(f's_cmp_lg_u32 s{S_W}, 0', None), (f's_cbranch_scc1 L_{name}_noflag', None),
               ('s_mov_b64 s[36:37], exec', None), ('s_mov_b64 exec, 1', None),
               (f'buffer_store_dword v{ONE}, v{MYF}, s[68:71], 0 offen sc1', ('e', 7)),
               ('s_mov_b64 exec, s[36:37]', None), (f'L_{name}_noflag:', None)]
    inj = {}
    after_bar = None
    if sent:
        def after_bar():
            for l, _ in publish: a.e(l)
    else:
        for i, l in enumerate(send_lines()):
            inj.setdefault(G2OPT['sstart'] + i // 2, []).append([(l, ('e', 6))])
        sp = G2OPT['sstart'] + G2OPT['sdelay']
        inj.setdefault(sp, []).append([('WAIT', ('e', 6))])
        inj.setdefault(sp + 1, []).append([(l, None) for l, _ in publish])
    t = G2OPT['tstart']
    inj.setdefault(t, []).append([(f'buffer_load_dword v{POLL}, v{PARF}, s[68:71], 0 offen sc1', ('e', 2))])
    t += G2OPT['pdelay']
    inj.setdefault(t, []).append([('WAIT', ('e', 2)), (f'v_readfirstlane_b32 s17, v{POLL}', None), ('s_nop 1', None), ('s_cmp_ge_u32 s17, 1', None),
                                  (f's_cbranch_scc0 L_{name}_pp_slow', None), (f'L_{name}_pp_back:', None)])
    for i in range(8):
        r = PP + 4 * i
        inj.setdefault(t + 1 + i // 2, []).append(
            [(f'buffer_load_dwordx4 v[{r}:{r+3}], v{PART}, s[56:59], {"s22" if i >= 4 else "0"} offen offset:{(i%4)*1024} sc1', ('e', 3))])
    eng2.emit(name + '_o', w_pro=G2OPT['wo_wpro'], x_pro=XR - 1, overrun=False, marks=False, inject=inj, after_bar=after_bar)
    prof_mark(a, 5)
    a.e('s_waitcnt vmcnt(0)')
    a.e('s_nop 7')
    a.e(f's_mov_b32 s24, {fhex(-1.4426950408889634)}')
    for i in range(8):
        z, p, s_, xx, bb = 64 + 4 * i, PP + 4 * i, SACC + 4 * i, XX + 2 * i, BB + 2 * i
        b = 8 + 8 * (i & 1); u = b + 4
        zz = [f'v[{z}:{z+1}]', f'v[{z+2}:{z+3}]']; pp = [f'v[{p}:{p+1}]', f'v[{p+2}:{p+3}]']
        a.e(f'v_lshlrev_b32 v{b}, 16, v{bb}')
        a.e(f'v_and_b32 v{b+1}, 0xffff0000, v{bb}')
        a.e(f'v_lshlrev_b32 v{b+2}, 16, v{bb+1}')
        a.e(f'v_and_b32 v{b+3}, 0xffff0000, v{bb+1}')
        for h in range(2): a.e(f'v_pk_add_f32 {zz[h]}, {zz[h]}, {pp[h]}')
        for h in range(2): a.e(f'v_pk_add_f32 {zz[h]}, {zz[h]}, v[{b+2*h}:{b+2*h+1}]')
        for h in range(2): a.e(f'v_pk_mul_f32 {pp[h]}, {zz[h]}, s[24:25] op_sel_hi:[1,0]')
        for r in range(4): a.e(f'v_exp_f32 v{p+r}, v{p+r}')
        a.e(f'v_lshlrev_b32 v{u}, 16, v{xx}')
        a.e(f'v_and_b32 v{u+1}, 0xffff0000, v{xx}')
        for h in range(2): a.e(f'v_pk_add_f32 {pp[h]}, {pp[h]}, 1.0 op_sel_hi:[1,0]')
        for r in range(4): a.e(f'v_rcp_f32 v{p+r}, v{p+r}')
        a.e(f'v_lshlrev_b32 v{u+2}, 16, v{xx+1}')
        a.e(f'v_and_b32 v{u+3}, 0xffff0000, v{xx+1}')
        for h in range(2): a.e(f'v_pk_mul_f32 {zz[h]}, {zz[h]}, {pp[h]}')
        for h in range(2): a.e(f'v_pk_fma_f32 v[{u+2*h}:{u+2*h+1}], v[{s_+2*h}:{s_+2*h+1}], {zz[h]}, v[{u+2*h}:{u+2*h+1}]')
        d = 2 + 2 * (i & 1)
        a.e(f'v_cvt_pk_bf16_f32 v{d}, v{u}, v{u+1}')
        a.e(f'v_cvt_pk_bf16_f32 v{d+1}, v{u+2}, v{u+3}')
        a.e(f'buffer_store_dwordx2 v[{d}:{d+1}], v{XO}, s[32:35], 0 offen offset:{(i >> 2) * 64 + (i & 3) * 16}')
    a.e(f's_branch L_{name}_done')
    a.label(f'L_{name}_pp_slow')
    poll(a, f'L_{name}_pp', 68, PARF, 1, POLL, 17, 19)
    a.e(f's_branch L_{name}_pp_back')
    a.label(f'L_{name}_done')

def gemm2_body16(a, name, lds_base=0):
    if G2OPT['setup_prio'] is not None: a.e(f's_setprio {G2OPT["setup_prio"]}')
    a.e('s_and_b32 s12, s28, 7')
    a.e('s_lshr_b32 s13, s28, 3')
    a.e('s_and_b32 s14, s12, 1')
    a.e('s_lshr_b32 s12, s12, 1')
    a.e('s_lshl_b32 s12, s12, 2')
    a.e('s_and_b32 s15, s13, 3')
    a.e('s_add_u32 s12, s12, s15')
    a.e('s_lshr_b32 s13, s13, 2')
    a.e('v_lshrrev_b32 v1, 6, v0')
    a.e('s_nop 0')
    a.e(f'v_readfirstlane_b32 s{S_W}, v1')
    srd(a, SRD_X, 4, 14*MB, WS_H)
    a.e(f's_mul_i32 s18, s14, {1792*2048}')
    a.e('s_lshl_b32 s19, s13, 8')
    a.e('s_add_u32 s18, s18, s19')
    a.e(f's_add_u32 s{SRD_W}, s6, s18')
    a.e(f's_addc_u32 s{SRD_W+1}, s7, 0')
    a.e(f's_and_b32 s{SRD_W+1}, s{SRD_W+1}, 0xffff')
    a.e(f's_sub_u32 s{SRD_W+2}, {hex(1792*2048)}, s19')
    a.e(f's_mov_b32 s{SRD_W+3}, 0x20000')
    def plan(cb, tb): return ('v', 64 + (cb * 2 + tb) * 4)
    cfg = GemmCfg(name, NB=8, TB=2, nsteps=56, swapped=True, kperm='id', wstride=2048, acc_plan=plan, ring_kind='v')
    eng = GemmEngine(a, cfg, 8, 128, 160)
    assert eng.vend <= 20
    a.e('s_lshl_b32 s16, s12, 3')
    a.e(f's_lshl_b32 s17, s{S_W}, 1')
    a.e('s_add_u32 s16, s16, s17')
    a.e('v_and_b32 v2, 63, v0')
    a.e('v_lshlrev_b32 v2, 4, v2')
    a.e('s_mul_i32 s19, s14, 57344')
    a.e('s_mul_i32 s17, s16, 114688')
    a.e('s_add_u32 s17, s17, s19')
    a.e(f'v_add_u32 v{eng.vXo[0]}, s17, v2')
    a.e(f'v_add_u32 v{eng.vXo[1]}, 114688, v{eng.vXo[0]}')
    eng.setup_dma(vt=2, lds_base=lds_base)
    a.e('s_lshl_b32 s19, s14, 7')
    for q in range(cfg.Q):
        a.e(f'v_xor_b32 v{eng.vDo[q]}, s19, v{eng.vDo[q]}')
    SEND, PART, MYF, PARF, REL, XO, POLL, ONE = 20, 21, 22, 23, 24, 25, 27, 28
    SACC, XX, BB, PP = 32, 232, 248, 96
    XR = G2OPT['XR']
    def plan2(cb, tb): return ('v', SACC + (cb * 2 + tb) * 4)
    cfg2 = GemmCfg(name + '_o', NB=4, TB=2, nsteps=32, swapped=True, kperm='o32', wstride=2048, acc_plan=plan2, ring_kind='v', R=16, XR=XR, unroll=16)
    cfg2.xflags = ' sc1' if G2OPT['osc1'] else ''
    eng2 = GemmEngine(a, cfg2, 224, 160, 128, sregs=dict(xoff=25, woff=26, m0b=27, srdx=72, srdw=76))
    assert eng2.vend <= 232
    a.e('s_lshl_b32 s23, s13, 1')
    a.e('s_add_u32 s23, s23, s14')
    a.e('s_lshl_b32 s18, s23, 7')
    srd(a, 72, 62, 4*MB)
    srd(a, 76, 64, 2048)
    a.e('v_and_b32 v3, 15, v0')
    a.e('v_lshlrev_b32 v3, 11, v3')
    a.e('v_bfe_u32 v4, v0, 4, 2')
    a.e('v_lshl_add_u32 v3, v4, 3, v3')
    a.e('s_lshl_b32 s17, s16, 15')
    a.e('s_add_u32 s17, s17, s18')
    a.e(f'v_add_u32 v{XO}, s17, v3')
    a.e(f'v_add_u32 v{XO+1}, 32768, v{XO}')
    a.e('v_lshlrev_b32 v4, 3, v4')
    a.e('v_add_u32 v29, s18, v4')
    extra = []
    for cb in range(4):
        for tb in range(2):
            r = XX + (cb * 2 + tb) * 2
            extra.append(f'buffer_load_dwordx2 v[{r}:{r+1}], v{XO+tb}, s[72:75], 0 offen offset:{32*cb}')
    for cb in range(4):
        extra.append(f'buffer_load_dwordx2 v[{BB+2*cb}:{BB+2*cb+1}], v29, s[76:79], 0 offen offset:{32*cb}')
    def between():
        eng.setup_tr(vt=2)
        for r in range(64, 128): a.e(f'v_mov_b32 v{r}, 0')
        if G2OPT['setup_prio'] is not None: a.e(f's_setprio {G2OPT["prio"] or 0}')
    def tail_setup():
        b = Asm()
        for r in range(SACC, SACC + 32): b.e(f'v_mov_b32 v{r}, 0')
        srd(b, 56, 4, 8*MB, WS_PX)
        srd(b, 68, 4, 0x20000, WS_FLAGS)
        srd(b, 32, 66, 4*MB)
        b.e('s_lshl_b32 s17, s28, 15')
        b.e(f's_lshl_b32 s19, s{S_W}, 13')
        b.e('s_add_u32 s20, s17, s19')
        b.e('s_xor_b32 s21, s20, 0x8000')
        b.e('v_and_b32 v2, 63, v0')
        b.e('v_lshlrev_b32 v2, 4, v2')
        b.e(f'v_add_u32 v{SEND}, s20, v2')
        b.e(f'v_add_u32 v{PART}, s21, v2')
        b.e('s_mov_b32 s22, 4096')
        b.e('s_lshl_b32 s17, s28, 6')
        b.e('s_add_u32 s17, s17, 4096')
        b.e(f'v_mov_b32 v{MYF}, s17')
        b.e('s_xor_b32 s17, s17, 64')
        b.e(f'v_mov_b32 v{PARF}, s17')
        b.e('s_lshl_b32 s17, s28, 7')
        b.e('s_add_u32 s17, s17, 0x10000')
        b.e(f'v_mov_b32 v{REL}, s17')
        b.e(f'v_mov_b32 v{ONE}, 1')
        srd(b, 72, 4, 4*MB, WS_O)
        b.e('s_add_u32 s76, s60, s18')
        b.e('s_addc_u32 s77, s61, 0')
        b.e('s_and_b32 s77, s77, 0xffff')
        b.e(f's_sub_u32 s78, {hex(1024*1024*2)}, s18')
        b.e('s_mov_b32 s79, 0x20000')
        b.e('s_lshl_b32 s17, s16, 15')
        b.e(f'v_add_u32 v{eng2.vXo[0]}, s17, v2')
        b.e(f'v_add_u32 v{eng2.vXo[1]}, 32768, v{eng2.vXo[0]}')
        keep = eng2.a; eng2.a = b
        eng2.setup_dma(vt=2, lds_base=lds_base)
        eng2.setup_tr(vt=2)
        eng2.a = keep
        return [l.strip() for l in b.L]
    if G2OPT['prio'] is not None and G2OPT['setup_prio'] is None: a.e(f's_setprio {G2OPT["prio"]}')
    gemm.GOPT['nobar'] = G2OPT['nobar']
    inj = {53: [[(f'buffer_load_dword v{POLL}, v{REL}, s[68:71], 0 offen sc1', ('e', 5))]]}
    ts = tail_setup()
    if G2OPT['ts_inloop']:
        groups = []; cur = []
        for l in ts:
            cur.append((l, None))
            if len(cur) >= 6 and not l.startswith('s_add_u32'):
                groups.append(cur); cur = []
        if cur: groups.append(cur)
        for gi, g in enumerate(groups):
            inj.setdefault(2 + gi * 5 // len(groups), []).append(g)
    else:
        old_between = between
        def between():
            old_between()
            for l in ts: a.e(l)
    eng.emit(name, between=between, extra=extra, w_pro=2, x_pro=2, overrun=False, inject=inj)
    gemm.GOPT['nobar'] = False
    a.e('s_waitcnt vmcnt(0)')
    a.e('s_barrier')
    sent = G2OPT['send_first']
    def send_lines():
        return [f'buffer_store_dwordx4 v[{96+4*i}:{96+4*i+3}], v{SEND}, s[56:59], {"s22" if i >= 4 else "0"} offen offset:{(i%4)*1024} sc1' for i in range(8)]
    if sent:
        a.e('s_nop 7')
        for l in send_lines(): a.e(l)
    a.e(f'v_readfirstlane_b32 s17, v{POLL}')
    a.e('s_nop 1')
    a.e('s_cmp_ge_u32 s17, 1')
    a.e(f's_cbranch_scc1 L_{name}_pa_out')
    poll(a, f'L_{name}_pa', 68, REL, 1, POLL, 17, 19)
    prof_mark(a, 3)
    publish = [(f's_cmp_lg_u32 s{S_W}, 0', None), (f's_cbranch_scc1 L_{name}_noflag', None),
               ('s_mov_b64 s[36:37], exec', None), ('s_mov_b64 exec, 1', None),
               (f'buffer_store_dword v{ONE}, v{MYF}, s[68:71], 0 offen sc1', ('e', 7)),
               ('s_mov_b64 exec, s[36:37]', None), (f'L_{name}_noflag:', None)]
    inj = {}
    after_bar = None
    if sent:
        def after_bar():
            for l, _ in publish: a.e(l)
    else:
        for i, l in enumerate(send_lines()):
            inj.setdefault(G2OPT['sstart'] + i // 2, []).append([(l, ('e', 6))])
        sp = G2OPT['sstart'] + G2OPT['sdelay']
        inj.setdefault(sp, []).append([('WAIT', ('e', 6))])
        inj.setdefault(sp + 1, []).append([(l, None) for l, _ in publish])
    t = G2OPT['tstart']
    inj.setdefault(t, []).append([(f'buffer_load_dword v{POLL}, v{PARF}, s[68:71], 0 offen sc1', ('e', 2))])
    t += G2OPT['pdelay']
    inj.setdefault(t, []).append([('WAIT', ('e', 2)), (f'v_readfirstlane_b32 s17, v{POLL}', None), ('s_nop 1', None), ('s_cmp_ge_u32 s17, 1', None),
                                  (f's_cbranch_scc0 L_{name}_pp_slow', None), (f'L_{name}_pp_back:', None)])
    for i in range(8):
        r = PP + 4 * i
        inj.setdefault(t + 1 + i // 2, []).append(
            [(f'buffer_load_dwordx4 v[{r}:{r+3}], v{PART}, s[56:59], {"s22" if i >= 4 else "0"} offen offset:{(i%4)*1024} sc1', ('e', 3))])
    eng2.emit(name + '_o', w_pro=G2OPT['wo_wpro'], x_pro=XR - 1, overrun=False, marks=False, inject=inj, after_bar=after_bar)
    prof_mark(a, 5)
    a.e('s_waitcnt vmcnt(0)')
    a.e('s_nop 7')
    a.e(f's_mov_b32 s24, {fhex(-1.4426950408889634)}')
    for i in range(8):
        z, p, s_, xx, bb = 64 + 4 * i, PP + 4 * i, SACC + 4 * i, XX + 2 * i, BB + 2 * (i >> 1)
        b = 8 + 8 * (i & 1); u = b + 4
        zz = [f'v[{z}:{z+1}]', f'v[{z+2}:{z+3}]']; pp = [f'v[{p}:{p+1}]', f'v[{p+2}:{p+3}]']
        a.e(f'v_lshlrev_b32 v{b}, 16, v{bb}')
        a.e(f'v_and_b32 v{b+1}, 0xffff0000, v{bb}')
        a.e(f'v_lshlrev_b32 v{b+2}, 16, v{bb+1}')
        a.e(f'v_and_b32 v{b+3}, 0xffff0000, v{bb+1}')
        for h in range(2): a.e(f'v_pk_add_f32 {zz[h]}, {zz[h]}, {pp[h]}')
        for h in range(2): a.e(f'v_pk_add_f32 {zz[h]}, {zz[h]}, v[{b+2*h}:{b+2*h+1}]')
        for h in range(2): a.e(f'v_pk_mul_f32 {pp[h]}, {zz[h]}, s[24:25] op_sel_hi:[1,0]')
        for r in range(4): a.e(f'v_exp_f32 v{p+r}, v{p+r}')
        a.e(f'v_lshlrev_b32 v{u}, 16, v{xx}')
        a.e(f'v_and_b32 v{u+1}, 0xffff0000, v{xx}')
        for h in range(2): a.e(f'v_pk_add_f32 {pp[h]}, {pp[h]}, 1.0 op_sel_hi:[1,0]')
        for r in range(4): a.e(f'v_rcp_f32 v{p+r}, v{p+r}')
        a.e(f'v_lshlrev_b32 v{u+2}, 16, v{xx+1}')
        a.e(f'v_and_b32 v{u+3}, 0xffff0000, v{xx+1}')
        for h in range(2): a.e(f'v_pk_mul_f32 {zz[h]}, {zz[h]}, {pp[h]}')
        for h in range(2): a.e(f'v_pk_fma_f32 v[{u+2*h}:{u+2*h+1}], v[{s_+2*h}:{s_+2*h+1}], {zz[h]}, v[{u+2*h}:{u+2*h+1}]')
        d = 2 + 2 * (i & 1)
        a.e(f'v_cvt_pk_bf16_f32 v{d}, v{u}, v{u+1}')
        a.e(f'v_cvt_pk_bf16_f32 v{d+1}, v{u+2}, v{u+3}')
        a.e(f'buffer_store_dwordx2 v[{d}:{d+1}], v{XO + (i & 1)}, s[32:35], 0 offen offset:{32 * (i >> 1)}')
    a.e(f's_branch L_{name}_done')
    a.label(f'L_{name}_pp_slow')
    poll(a, f'L_{name}_pp', 68, PARF, 1, POLL, 17, 19)
    a.e(f's_branch L_{name}_pp_back')
    a.label(f'L_{name}_done')

def gen_gemm2(name='gemm2_kernel'):
    a = Asm()
    kernel_header(a, name)
    prof_begin(a, name)
    a.e('s_cmp_ge_u32 s2, 256')
    a.e(f's_cbranch_scc1 L_{name}_end')
    a.e(f's_load_dwordx2 s[4:5], s[0:1], {ARG_WS}')
    a.e(f's_load_dwordx2 s[6:7], s[0:1], {ARG_W2}')
    a.e('s_mov_b32 s28, s2')
    a.e('s_waitcnt lgkmcnt(0)')
    gemm2_body(a, name)
    a.label(f'L_{name}_end')
    finish(a, name)
    return a.text() + kernel_desc(name, 192, 192)
```

```python
from common import *
import common
from gemm import *

K3OPT = dict(XR=16, wpro=4, xpro=4, rate=2)
def gen_k3(name='out_kernel', att=32):
    a = Asm()
    kernel_header(a, name)
    prof_begin(a, name)
    a.e('s_cmp_ge_u32 s2, 256')
    a.e(f's_cbranch_scc1 L_{name}_end')
    a.e(f's_load_dwordx2 s[4:5], s[0:1], {ARG_WS}')
    a.e(f's_load_dwordx2 s[6:7], s[0:1], {ARG_WO}')
    a.e(f's_load_dwordx2 s[8:9], s[0:1], {ARG_X}')
    a.e(f's_load_dwordx2 s[10:11], s[0:1], {ARG_B2}')
    a.e(f's_load_dwordx2 s[20:21], s[0:1], {ARG_OUT}')
    a.e('s_and_b32 s12, s2, 7')
    a.e('s_lshr_b32 s13, s2, 3')
    a.e('s_lshl_b32 s12, s12, 1')
    a.e('s_and_b32 s15, s13, 1')
    a.e('s_add_u32 s12, s12, s15')
    a.e('s_lshr_b32 s13, s13, 1')
    a.e('v_lshrrev_b32 v1, 6, v0')
    a.e('s_nop 0')
    a.e(f'v_readfirstlane_b32 s{S_W}, v1')
    a.e('s_waitcnt lgkmcnt(0)')
    srd(a, SRD_X, 4, 4*MB, WS_O)
    a.e('s_lshl_b32 s18, s13, 7')
    a.e(f's_add_u32 s{SRD_W}, s6, s18')
    a.e(f's_addc_u32 s{SRD_W+1}, s7, 0')
    a.e(f's_and_b32 s{SRD_W+1}, s{SRD_W+1}, 0xffff')
    a.e(f's_sub_u32 s{SRD_W+2}, {hex(1024*1024*2)}, s18')
    a.e(f's_mov_b32 s{SRD_W+3}, 0x20000')
    def plan(cb, tb): return ('v', 64 + (cb * 2 + tb) * 4)
    cfg = GemmCfg(name, NB=4, TB=2, nsteps=32, swapped=True, kperm='o32' if att == 32 else 'id', wstride=2048, acc_plan=plan, ring_kind='a', R=16, XR=K3OPT['XR'], unroll=16)
    eng = GemmEngine(a, cfg, 8, 0, 128)
    a.e('s_lshl_b32 s16, s12, 3')
    a.e(f's_lshl_b32 s17, s{S_W}, 1')
    a.e('s_add_u32 s16, s16, s17')
    a.e('v_and_b32 v2, 63, v0')
    a.e('v_lshlrev_b32 v2, 4, v2')
    for tb in range(2):
        a.e(f's_add_u32 s17, s16, {tb}')
        a.e('s_lshl_b32 s17, s17, 15')
        a.e(f'v_add_u32 v{eng.vXo[tb]}, s17, v2')
    eng.setup_dma(vt=2)
    PP, XX, BB = 160, 224, 240
    srd(a, 56, 4, 16*MB, WS_P)
    srd(a, 60, 8, 4*MB)
    srd(a, 64, 10, 2048)
    srd(a, 68, 20, 4*MB)
    a.e('s_lshr_b32 s17, s13, 1')
    a.e('s_lshl_b32 s19, s12, 3')
    a.e('s_add_u32 s17, s17, s19')
    a.e('s_lshl_b32 s17, s17, 2')
    a.e(f's_add_u32 s17, s17, s{S_W}')
    a.e('s_lshl_b32 s17, s17, 14')
    a.e('s_and_b32 s19, s13, 1')
    a.e('s_lshl_b32 s19, s19, 13')
    a.e('s_add_u32 s17, s17, s19')
    a.e('v_and_b32 v2, 63, v0')
    a.e('v_lshlrev_b32 v2, 4, v2')
    a.e('v_add_u32 v3, s17, v2')
    tail = []
    for sp in range(2):
        for hlf in range(2):
            a.e(f's_mov_b32 s{72 + 2*sp + hlf}, {sp * 8 * MB + hlf * 4096}')
            for i in range(4):
                r = PP + 32 * sp + 16 * hlf + 4 * i
                tail.append(f'buffer_load_dwordx4 v[{r}:{r+3}], v3, s[56:59], s{72 + 2*sp + hlf} offen offset:{i*1024}')
    a.e('v_and_b32 v4, 15, v0')
    a.e('v_lshlrev_b32 v4, 11, v4')
    a.e('v_bfe_u32 v5, v0, 4, 2')
    a.e('v_lshl_add_u32 v4, v5, 3, v4')
    a.e('s_lshl_b32 s17, s16, 15')
    a.e('s_add_u32 s17, s17, s18')
    a.e('v_add_u32 v6, s17, v4')
    a.e('v_add_u32 v7, 32768, v6')
    for cb in range(4):
        for tb in range(2):
            r = XX + (cb * 2 + tb) * 2
            tail.append(f'buffer_load_dwordx2 v[{r}:{r+1}], v{6+tb}, s[60:63], 0 offen offset:{32*cb}')
    a.e('v_lshlrev_b32 v5, 3, v5')
    a.e('v_add_u32 v5, s18, v5')
    for cb in range(4):
        tail.append(f'buffer_load_dwordx2 v[{BB+2*cb}:{BB+2*cb+1}], v5, s[64:67], 0 offen offset:{32*cb}')
    def zero():
        eng.setup_tr(vt=24)
        for r in range(64, 96): a.e(f'v_mov_b32 v{r}, 0')
    eng.emit(name, between=zero, tail=[[(l, ('e', 1))] for l in tail], tail_start=18, overrun=False, w_pro=K3OPT['wpro'], x_pro=K3OPT['xpro'], rate=K3OPT['rate'])
    a.e('s_waitcnt vmcnt(0)')
    a.e('s_nop 7'); a.e('s_nop 7')
    NL = -1.4426950408889634
    a.e(f's_mov_b32 s24, {fhex(NL)}')
    T = 32
    for cb in range(4):
        a.e(f'v_lshlrev_b32 v{T}, 16, v{BB+2*cb}')
        a.e(f'v_and_b32 v{T+1}, 0xffff0000, v{BB+2*cb}')
        a.e(f'v_lshlrev_b32 v{T+2}, 16, v{BB+2*cb+1}')
        a.e(f'v_and_b32 v{T+3}, 0xffff0000, v{BB+2*cb+1}')
        for tb in range(2):
            i = cb * 2 + tb
            p0, p1, s_, xx = PP + 4 * i, PP + 32 + 4 * i, 64 + 4 * i, XX + 2 * i
            u = T + 4
            for r in range(4):
                a.e(f'v_add_f32 v{p0+r}, v{p0+r}, v{p1+r}')
            for r in range(4):
                a.e(f'v_add_f32 v{p0+r}, v{p0+r}, v{T+r}')
            for r in range(4):
                a.e(f'v_mul_f32 v{u+r}, s24, v{p0+r}')
            for r in range(4):
                a.e(f'v_exp_f32 v{u+r}, v{u+r}')
            a.e('s_nop 0')
            for r in range(4):
                a.e(f'v_add_f32 v{u+r}, 1.0, v{u+r}')
            for r in range(4):
                a.e(f'v_rcp_f32 v{u+r}, v{u+r}')
            a.e('s_nop 0')
            for r in range(4):
                a.e(f'v_mul_f32 v{p0+r}, v{p0+r}, v{u+r}')
            a.e(f'v_lshlrev_b32 v{u}, 16, v{xx}')
            a.e(f'v_and_b32 v{u+1}, 0xffff0000, v{xx}')
            a.e(f'v_lshlrev_b32 v{u+2}, 16, v{xx+1}')
            a.e(f'v_and_b32 v{u+3}, 0xffff0000, v{xx+1}')
            for r in range(4):
                a.e(f'v_fma_f32 v{u+r}, v{s_+r}, v{p0+r}, v{u+r}')
            d = T + 8 + 2 * tb
            a.e(f'v_cvt_pk_bf16_f32 v{d}, v{u}, v{u+1}')
            a.e(f'v_cvt_pk_bf16_f32 v{d+1}, v{u+2}, v{u+3}')
            a.e(f'buffer_store_dwordx2 v[{d}:{d+1}], v{6+tb}, s[68:71], 0 offen offset:{32*cb}')
    a.label(f'L_{name}_end')
    finish(a, name)
    return a.text() + kernel_desc(name, 512, 256)
```

```python
from common import *

LNI = 47
LN_LDS = 131072
A_LD, A_ST, A_LW, A_LR, A_R, A_T0, A_T1 = 192, 193, 194, 195, 196, 197, 198
RAW, F, T1, T2 = 64, 80, 112, 144
SG0, SG1 = 6, 7
SUM, SW, P0, RS, R2 = 200, 208, 202, 206, 209

def ln_issue_loads(a, srd_x):
    a.e(f'v_and_b32 v{A_R}, 7, v0')
    a.e(f'v_lshrrev_b32 v{A_T0}, 3, v0')
    a.e(f's_lshl_b32 s3, s{LNI}, 3')
    a.e(f'v_add_u32 v{A_LD}, s3, v{A_R}')
    a.e(f'v_lshlrev_b32 v{A_LD}, 11, v{A_LD}')
    a.e(f'v_lshl_add_u32 v{A_LD}, v{A_T0}, 4, v{A_LD}')
    for i in range(4):
        a.e(f'buffer_load_dwordx4 v[{RAW+4*i}:{RAW+4*i+3}], v{A_LD}, s[{srd_x}:{srd_x+3}], 0 offen offset:{512*i}')

def ln_compute_and_publish(a, n_younger, srd_xn, srd_r2, srd_cnt, wave_sgpr):
    a.e(f's_lshr_b32 s36, s{LNI}, 1')
    a.e('s_lshl_b32 s36, s36, 15')
    a.e(f's_and_b32 s37, s{LNI}, 1')
    a.e('s_lshl_b32 s37, s37, 7')
    a.e('s_add_u32 s36, s36, s37')
    a.e(f'v_lshrrev_b32 v{A_ST}, 2, v{A_T0}')
    a.e(f'v_lshlrev_b32 v{A_ST}, 10, v{A_ST}')
    a.e(f'v_and_b32 v{A_T1}, 3, v{A_T0}')
    a.e(f'v_lshl_add_u32 v{A_ST}, v{A_T1}, 8, v{A_ST}')
    a.e(f'v_lshl_add_u32 v{A_ST}, v{A_R}, 4, v{A_ST}')
    a.e(f'v_add_u32 v{A_ST}, s36, v{A_ST}')
    a.e(f'v_lshrrev_b32 v{A_LW}, 6, v0')
    a.e(f'v_lshl_add_u32 v{A_LW}, v{A_LW}, 3, v{A_R}')
    a.e(f'v_lshlrev_b32 v{A_LW}, 2, v{A_LW}')
    a.e(f'v_add_u32 v{A_LW}, {LN_LDS}, v{A_LW}')
    a.e(f'v_lshlrev_b32 v{A_LR}, 2, v{A_R}')
    a.e(f'v_add_u32 v{A_LR}, {LN_LDS}, v{A_LR}')
    P2 = lambda r: f'v[{r}:{r+1}]'
    for i in range(4):
        a.e(f's_waitcnt vmcnt({min(63, 3 - i + n_younger)})')
        for j in range(4):
            s = RAW + 4 * i + j
            d = F + 8 * i + 2 * j
            a.e(f'v_lshlrev_b32 v{d}, 16, v{s}')
            a.e(f'v_and_b32 v{d+1}, 0xffff0000, v{s}')
    prof_mark(a, 3)
    def pk_tree(src, npairs, tmp, dst):
        cur = [src + 2 * i for i in range(npairs)]
        t = tmp
        while len(cur) > 1:
            nxt = []
            for p in range(0, len(cur), 2):
                a.e(f'v_pk_add_f32 {P2(t)}, {P2(cur[p])}, {P2(cur[p+1])}')
                nxt.append(t); t += 2
            cur = nxt
        a.e(f'v_add_f32 v{dst}, v{cur[0]}, v{cur[0]+1}')
    def wg_reduce(v, ldsoff):
        a.e('s_nop 1')
        a.e(f'v_add_f32_dpp v{v}, v{v}, v{v} row_ror:8 row_mask:0xf bank_mask:0xf')
        a.e(f'v_mov_b32 v{SW}, v{v}')
        a.e('s_nop 1')
        a.e(f'v_permlane16_swap_b32 v{v}, v{SW}')
        a.e('s_nop 1')
        a.e(f'v_add_f32 v{v}, v{v}, v{SW}')
        a.e(f'v_mov_b32 v{SW}, v{v}')
        a.e('s_nop 1')
        a.e(f'v_permlane32_swap_b32 v{v}, v{SW}')
        a.e('s_nop 1')
        a.e(f'v_add_f32 v{v}, v{v}, v{SW}')
        a.e(f'ds_write_b32 v{A_LW}, v{v} offset:{ldsoff}')
        a.e('s_waitcnt lgkmcnt(0)')
        a.e('s_barrier')
        for k in range(4):
            a.e(f'ds_read_b32 v{P0+k}, v{A_LR} offset:{ldsoff+32*k}')
        a.e('s_waitcnt lgkmcnt(0)')
        a.e(f'v_pk_add_f32 {P2(P0)}, {P2(P0)}, {P2(P0+2)}')
        a.e('s_nop 0')
        a.e(f'v_add_f32 v{v}, v{P0}, v{P0+1}')
    pk_tree(F, 16, T1, SUM)
    wg_reduce(SUM, 0)
    a.e(f'v_mul_f32 v{SUM}, {fhex(-1.0/1024)}, v{SUM}')
    for i in range(16): a.e(f'v_pk_add_f32 {P2(F+2*i)}, {P2(F+2*i)}, {P2(SUM)} op_sel_hi:[1,0]')
    for c in range(4): a.e(f'v_pk_mul_f32 {P2(T1+2*c)}, {P2(F+2*c)}, {P2(F+2*c)}')
    for i in range(4, 16): a.e(f'v_pk_fma_f32 {P2(T1+2*(i&3))}, {P2(F+2*i)}, {P2(F+2*i)}, {P2(T1+2*(i&3))}')
    pk_tree(T1, 4, T2, SUM)
    wg_reduce(SUM, 128)
    a.e(f'v_mul_f32 v{SUM}, {fhex(1.0/1024)}, v{SUM}')
    a.e(f'v_add_f32 v{RS}, {fhex(1e-5)}, v{SUM}')
    a.e(f'v_rsq_f32 v{RS}, v{RS}')
    a.e('s_nop 0')
    for i in range(16): a.e(f'v_pk_mul_f32 {P2(F+2*i)}, {P2(F+2*i)}, {P2(RS)} op_sel_hi:[1,0]')
    for i in range(16): a.e(f'v_cvt_pk_bf16_f32 v{RAW+i}, v{F+2*i}, v{F+2*i+1}')
    a.e('s_mov_b32 s36, 8192')
    a.e('s_mov_b32 s37, 16384')
    a.e('s_mov_b32 s27, 24576')
    for i in range(4):
        so = '0' if i == 0 else ('s36', 's37', 's27')[i-1]
        a.e(f'buffer_store_dwordx4 v[{RAW+4*i}:{RAW+4*i+3}], v{A_ST}, s[{srd_xn}:{srd_xn+3}], {so} offen sc1')
    a.e(f'v_mul_f32 v{R2}, v{RS}, v{RS}')
    a.e(f'v_mul_f32 v{R2}, v{R2}, v{SUM}')
    a.e(f'v_add_f32 v{R2}, {fhex(1e-5)}, v{R2}')
    a.e(f'v_rsq_f32 v{R2}, v{R2}')
    a.e(f'v_add_u32 v{A_T1}, s3, v{A_R}')
    a.e(f'v_lshlrev_b32 v{A_T1}, 2, v{A_T1}')
    a.e(f'buffer_store_dword v{R2}, v{A_T1}, s[{srd_r2}:{srd_r2+3}], 0 offen sc1')
    prof_mark(a, 4)
    a.e('s_waitcnt vmcnt(0)')
    a.e('s_barrier')
    prof_mark(a, 5)

def ln_clear_go(a, srd_fl):
    a.e(f's_lshl_b32 s36, s{LNI}, 7')
    a.e('s_add_u32 s36, s36, 0x8000')
    a.e(f'v_mov_b32 v{A_LW}, s36')
    a.e(f'v_mov_b32 v{A_LR}, 0')
    a.e(f'buffer_store_dword v{A_LR}, v{A_LW}, s[{srd_fl}:{srd_fl+3}], 0 offen sc1')

def ln_signal(a, label, srd_cnt, wave_sgpr):
    a.e(f's_cmp_lg_u32 s{wave_sgpr}, 0')
    a.e(f's_cbranch_scc1 {label}_nosig')
    a.e(f's_lshr_b32 s36, s{LNI}, 5')
    a.e('s_lshl_b32 s37, s36, 5')
    a.e(f'v_mov_b32 v{SG0}, s37')
    a.e(f'v_mov_b32 v{SG1}, 1')
    a.e('s_mov_b64 s[38:39], exec')
    a.e('s_mov_b64 exec, 1')
    a.e(f'buffer_atomic_add v{SG1}, v{SG0}, s[{srd_cnt}:{srd_cnt+3}], 0 offen sc0 sc1')
    a.e('s_mov_b64 exec, s[38:39]')
    a.label(f'{label}_nosig')

def ln_wait(a, label, n_younger, srd_fl, wave_sgpr, poll):
    a.e(f's_cmp_lg_u32 s{wave_sgpr}, 0')
    a.e(f's_cbranch_scc1 {label}_join')
    a.e(f's_waitcnt vmcnt({n_younger})')
    prof_mark(a, 0)
    a.e(f'v_readfirstlane_b32 s37, v{SG1}')
    a.e(f's_lshr_b32 s36, s{LNI}, 5')
    a.e('s_cmp_eq_u32 s37, 31')
    a.e(f's_cbranch_scc0 {label}_wait')
    a.e('s_lshl_b32 s36, s36, 12')
    a.e('s_add_u32 s36, s36, 0x8000')
    a.e(f'v_lshlrev_b32 v{SG0}, 7, v0')
    a.e(f'v_add_u32 v{SG0}, s36, v{SG0}')
    a.e(f'v_mov_b32 v{SG1}, 1')
    a.e('s_mov_b32 exec_hi, 0')
    a.e(f'buffer_store_dword v{SG1}, v{SG0}, s[{srd_fl}:{srd_fl+3}], 0 offen sc1')
    a.e('s_mov_b64 exec, s[38:39]')
    a.e(f's_branch {label}_join')
    a.label(f'{label}_wait')
    a.e(f's_lshl_b32 s36, s{LNI}, 7')
    a.e('s_add_u32 s36, s36, 0x8000')
    a.e(f'v_mov_b32 v{SG0}, s36')
    poll(a, f'{label}_p', srd_fl, SG0, 1, SG1, 36, 37)
    a.label(f'{label}_join')
    a.e('s_barrier')
```

```python
import sys
from common import *
import common
from k0_ln import gen_k0
from k1_gemm1 import gen_k1
from k2_attn import gen_attn
from k2_gemm2 import gen_gemm2
from k2_fused import gen_k2
from k3_out import gen_k3

def build(kernels):
    head = open('recurrent_scan__mha_block__mixer_channel_mlp__prompt.s.ref').read().split('\n')
    hdr = [l for l in head if l.startswith(';') and 'kernarg' in l.lower() or l.startswith(';   offset')]
    out = '\n'.join(hdr) + '\n'
    for name, text, grid, block, lds in kernels:
        out += f'; @launch kernel={name} grid=({grid},1,1) block=({block},1,1) lds={lds}\n'
    out += '.amdgcn_target "amdgcn-amd-amdhsa--gfx950"\n.text\n'
    seen = set()
    for name, text, grid, block, lds in kernels:
        if name in seen: continue
        seen.add(name)
        out += text
    return '\n'.join(l.strip() if not l.startswith(';') else l for l in out.split('\n'))

if __name__ == '__main__':
    opts = sys.argv[2:]
    if 'prof' in opts: common.PROF = True
    import k2_attn, k2_gemm2, k1_gemm1, k3_out
    for o in opts:
        if o.startswith('st.'):
            k, v = o[3:].split('='); common.STORE_FLAGS[k] = v.replace('+', ' ')
        if o.startswith('g32='):
            common.ENG['g32'] = eval(o[4:])
        if o.startswith('cpf='):
            common.CODEPF['on'] = eval(o[4:])
        if o.startswith('pf.'):
            k, v = o[3:].split('='); common.PF[k] = eval(v)
        if o.startswith('k1.'):
            k, v = o[3:].split('='); k1_gemm1.K1OPT[k] = eval(v)
        if o.startswith('k3.'):
            k, v = o[3:].split('='); k3_out.K3OPT[k] = eval(v)
        if o.startswith('a.'):
            k, v = o[2:].split('='); k2_attn.OPT[k] = eval(v)
        if o.startswith('g.'):
            k, v = o[2:].split('='); k2_gemm2.G2OPT[k] = eval(v)
    ks = []
    if not k1_gemm1.K1OPT['fuse_ln']:
        ks += [('ln_kernel', gen_k0(), 256, 256, 256)]
    ks += [('gemm1_kernel', gen_k1(), 256, 256, 131072 + 256)]
    if 'split' in opts:
        ks += [('attn_kernel', gen_attn(), 256, 256, 65536 + 256),
               ('gemm2_kernel', gen_gemm2(), 256, 256, 65536)]
    else:
        order = [o for o in opts if o in ('attn_first', 'gemm_first', 'inter')]
        ks += [('mid_kernel', gen_k2(order=order[0] if order else 'attn_first'), 512, 256, 65536 + 256)]
    if not k2_gemm2.G2OPT['fused']:
        ks += [('out_kernel', gen_k3(), 256, 256, 65536)]
    open(sys.argv[1], 'w').write(build(ks))
```
